```python
import torch

def _softmax(x, axis=-1):
    return torch.softmax(x, dim=axis)
def _gelu(x):
    return torch.nn.functional.gelu(x, approximate="tanh")
def _silu(x):
    return torch.nn.functional.silu(x)
def _sigmoid(x):
    return torch.sigmoid(x)
def _layernorm(x, axis=-1, eps=1e-5):
    m = x.mean(dim=axis, keepdim=True)
    v = x.var(dim=axis, keepdim=True, unbiased=False)
    return (x - m) / torch.sqrt(v + eps)
def _scatter_add(tgt, idx, src, axis=0):
    return tgt.clone().index_add_(axis, idx, src)
def _segment_sum(src, seg, n):
    out = torch.zeros((n,) + src.shape[1:], dtype=src.dtype)
    return out.index_add_(0, seg, src)
def _pad(x, pw):
    flat = tuple(v for pair in reversed(pw) for v in pair)
    return torch.nn.functional.pad(x, flat)

kernel_name = 'recurrent_scan__softmax_full_mha__moe_arch_mod__prompt'

def setup_inputs():

    _w = (lambda a: (lambda t: t.to(torch.bfloat16) if t.is_floating_point() else t)(torch.as_tensor(a)))
    def _A_setup():
        B, S, D = 1, 2048, 512
        return {
            "x": _w((lambda *s: torch.randn(*s, dtype=torch.bfloat16) * 0.05)(B, S, D)),
            "wqkv": _w((lambda *s: torch.randn(*s, dtype=torch.bfloat16) * 0.05)(D, 3 * D)),
            "wo": _w((lambda *s: torch.randn(*s, dtype=torch.bfloat16) * 0.05)(D, D)),
        }
    _A_in = _A_setup()

    def _B_setup():
        B, S, D, F, C = 1, 2048, 512, 1792, 2
        return {
            "x": _w((lambda *s: torch.randn(*s, dtype=torch.bfloat16) * 0.05)(B, S, D)),
            "w_r": _w((lambda *s: torch.randn(*s, dtype=torch.bfloat16) * 0.05)(D)),
            "w_gate": _w((lambda *s: torch.randn(*s, dtype=torch.bfloat16) * 0.05)(D, F)),
            "w_up": _w((lambda *s: torch.randn(*s, dtype=torch.bfloat16) * 0.05)(D, F)),
            "w_down": _w((lambda *s: torch.randn(*s, dtype=torch.bfloat16) * 0.05)(F, D)),
        }
    _B_in = _B_setup()

    return {
        "A_x": _A_in["x"],
        "A_wqkv": _A_in["wqkv"],
        "A_wo": _A_in["wo"],
        "B_x": _B_in["x"],
        "B_w_r": _B_in["w_r"],
        "B_w_gate": _B_in["w_gate"],
        "B_w_up": _B_in["w_up"],
        "B_w_down": _B_in["w_down"],
    }

def reference(A_x, A_wqkv, A_wo, B_x, B_w_r, B_w_gate, B_w_up, B_w_down):
    def _A_ref(x, wqkv, wo):
        B, S, D = x.shape
        H = 32; Dh = D // H
        qkv = (lambda x, *d: x.permute(*d))((x @ wqkv).reshape(B, S, 3, H, Dh), 2, 0, 3, 1, 4)
        q, k, v = qkv[0], qkv[1], qkv[2]
        scale = Dh ** -0.5
        scores = torch.einsum("bhqd,bhkd->bhqk", q, k) * scale
        p = _softmax(scores, axis=-1)
        o = torch.einsum("bhqk,bhkd->bhqd", p, v)
        return (lambda x, *d: x.permute(*d))(o, 0, 2, 1, 3).reshape(B, S, D) @ wo

    def _B_ref(x, w_r, w_gate, w_up, w_down):
        B, S, D = x.shape
        C = 2
        r = x @ w_r
        idx = torch.argsort(-r, axis=-1)[:, :C]
        idx_e = (lambda x, n, axis: torch.repeat_interleave(x, n, dim=axis))(idx.reshape(B, C, 1), D, axis=2)
        x_sel = (lambda x, i, axis: torch.take_along_dim(x, i, dim=axis))(x, idx_e, axis=1)
        g = _silu(x_sel @ w_gate)
        u = x_sel @ w_up
        y = (g * u) @ w_down
        r_sel = _sigmoid((lambda x, i, axis: torch.take_along_dim(x, i, dim=axis))(r, idx, axis=1))
        y = y * r_sel.reshape(B, C, 1)
        b_off = (torch.arange(B) * S).reshape(B, 1)
        flat_idx = (idx + b_off).reshape(B * C)
        zero = (x * 0.0).reshape(B * S, D)
        upd = _scatter_add(zero, flat_idx, y.reshape(B * C, D), axis=0)
        return x + upd.reshape(B, S, D)

    x = A_x
    xn = _layernorm(x, axis=-1)
    s = _A_ref(xn, A_wqkv, A_wo)
    g = _silu(_B_ref(xn, B_w_r, B_w_gate, B_w_up, B_w_down))
    return x + s * g
```

```python
import re

TRANS = ("v_exp_f32", "v_log_f32", "v_rcp_f32", "v_rsq_f32", "v_sqrt_f32", "v_sin_f32", "v_cos_f32")
REG_RE = re.compile(r"^(-|\|)?(abs\()?([vsa])(\d+|\[(\d+):(\d+)\])\)?\|?$")


def regs_of(op):
    op = op.strip()
    if op in ("vcc", "exec", "m0", "scc"):
        return {op}
    if op in ("vcc_lo", "vcc_hi"):
        return {"vcc"}
    if op in ("exec_lo", "exec_hi"):
        return {"exec"}
    m = REG_RE.match(op)
    if not m:
        return set()
    k = m.group(3)
    if m.group(5) is not None:
        return {"%s%d" % (k, i) for i in range(int(m.group(5)), int(m.group(6)) + 1)}
    return {"%s%s" % (k, m.group(4))}


def split_ops(s):
    out, depth, cur = [], 0, ""
    for ch in s:
        if ch in "[(":
            depth += 1
        if ch in "])":
            depth -= 1
        if ch == "," and depth == 0:
            out.append(cur.strip())
            cur = ""
        else:
            cur += ch
    if cur.strip():
        out.append(cur.strip())
    return out


class Ins:
    def __init__(self, text):
        self.text = text
        t = text.split(";")[0].strip()
        parts = t.split(None, 1)
        self.mn = parts[0]
        rest = parts[1] if len(parts) > 1 else ""
        ops = split_ops(rest)
        self.mods = ""
        if ops:
            last = ops[-1].split(None, 1)
            if len(last) > 1 and not self.mn.startswith("s_waitcnt"):
                ops[-1] = last[0]
                self.mods = last[1]
        self.ops = ops
        mn = self.mn
        self.is_mfma = mn.startswith("v_mfma") or mn.startswith("v_smfmac")
        self.is_valu = mn.startswith("v_") and not self.is_mfma
        self.is_ds = mn.startswith("ds_")
        self.is_vmem = mn.startswith("buffer_") or mn.startswith("global_")
        self.is_salu = mn.startswith("s_")
        self.is_trans = any(mn.startswith(x) for x in TRANS)
        self.is_dot = mn.startswith("v_dot")
        self.is_dpp = "_dpp" in mn
        self.is_perml = mn.startswith("v_permlane")
        self.is_rdl = mn.startswith("v_readlane") or mn.startswith("v_readfirstlane")
        self.is_dma = self.is_vmem and re.search(r"\blds\b", self.mods) is not None
        self.w, self.r = set(), set()
        self.A = self.B = self.C = set()
        self.passes = 0
        self.store_data = set()
        R = [regs_of(o) for o in ops]
        if self.is_mfma:
            self.w = R[0]
            self.A, self.B = R[1], R[2]
            if mn.startswith("v_smfmac"):
                self.C = R[0]
                self.B = self.B | R[3]
            else:
                self.C = R[3]
            self.r = self.A | self.B | self.C
            self.passes = 8 if "32x32" in mn else 4
        elif self.is_valu:
            if mn == "v_nop":
                pass
            elif self.is_perml:
                self.w = R[0] | R[1]
                self.r = R[0] | R[1]
            elif "_co_" in mn:
                self.w = R[0] | R[1]
                for x in R[2:]:
                    self.r |= x
            else:
                self.w = R[0]
                for x in R[1:]:
                    self.r |= x
                if mn.startswith("v_fmac") or mn.startswith("v_dot2c") or self.is_dpp or mn.startswith("v_writelane"):
                    self.r |= R[0]
        elif self.is_ds:
            if mn.startswith("ds_read") or mn.startswith("ds_bpermute") or mn.startswith("ds_swizzle") or "_rtn_" in mn:
                self.w = R[0]
                for x in R[1:]:
                    self.r |= x
            else:
                for x in R:
                    self.r |= x
        elif self.is_vmem:
            if "load" in mn and not self.is_dma:
                self.w = R[0]
                for x in R[1:]:
                    self.r |= x
            else:
                for x in R:
                    self.r |= x
                if "store" in mn and ("x4" in mn or "x3" in mn):
                    self.store_data = R[0] if mn.startswith("buffer_") else R[1]
            if self.is_dma:
                self.r |= {"m0"}
        elif self.is_salu:
            if mn.startswith("s_cmp") or mn.startswith("s_cbranch") or mn in ("s_branch", "s_nop", "s_waitcnt", "s_barrier", "s_sleep", "s_setprio", "s_endpgm") or mn.startswith("s_bitcmp"):
                for x in R:
                    self.r |= x
            else:
                self.w = R[0] if R else set()
                for x in R[1:]:
                    self.r |= x
                if "saveexec" in mn:
                    self.w |= {"exec"}

    def states(self):
        if self.mn == "s_nop":
            return int(self.ops[0], 0) + 1
        return 1


def need(p, c):
    n = 0
    vw = {x for x in p.w if x[0] in "va" and x != "vcc"}
    sw = {x for x in p.w if x[0] == "s" or x == "vcc"}
    if p.is_valu:
        if c.is_mfma and vw & c.r:
            n = max(n, 3 if p.is_dot else 2)
        if c.is_valu:
            if p.is_trans and not c.is_trans and vw & c.r:
                n = max(n, 1)
            if (c.is_perml or c.is_dpp) and vw & c.r:
                n = max(n, 2)
            if c.is_rdl and vw & c.r:
                n = max(n, 1)
            if sw & c.r:
                n = max(n, 4 if (c.is_rdl or c.mn.startswith("v_writelane")) else 2)
            if c.mn.startswith("v_cndmask") and "vcc" in sw and len(c.ops) == 3:
                n = max(n, 2)
        if p.is_dot and vw & (c.r | c.w):
            same_chain = c.mn == p.mn and not (vw & (regs_of(c.ops[1]) | regs_of(c.ops[2])))
            if not same_chain:
                n = max(n, 3)
        if c.is_vmem and sw & c.r:
            n = max(n, 5)
        if c.is_salu and sw & c.r:
            n = max(n, 1)
        if c.mn.startswith("s_cbranch_vcc") and "vcc" in sw:
            n = max(n, 1)
    if p.is_mfma:
        big = p.passes == 8
        if c.is_mfma:
            if p.w & (c.A | c.B):
                n = max(n, 12 if big else 8)
            if p.w & c.C and not (p.w == c.C and p.passes == c.passes):
                n = max(n, 10 if big else 6)
            if p.w & c.w and not (p.w == c.w and p.passes == c.passes):
                n = max(n, 10 if big else 6)
        elif c.is_valu or c.is_ds or c.is_vmem:
            if p.w & (c.r | c.w):
                n = max(n, 12 if big else 8)
            if c.is_valu and p.C & c.w:
                n = max(n, 7 if big else 3)
    if p.store_data and p.store_data & c.w:
        n = max(n, 2)
    if p.is_salu and "m0" in p.w and c.is_dma:
        n = max(n, 1)
    return n


class Asm:
    def __init__(self):
        self.items = []
        self.vm = []
        self.lg = []
        self.nlabel = 0

    def raw(self, s):
        self.items.append(s)

    def label(self, name):
        self.items.append(name + ":")

    def newlabel(self, base):
        self.nlabel += 1
        return "L_%s_%d" % (base, self.nlabel)

    def __call__(self, text, tag=None, optional=False):
        for line in text.split("\n"):
            line = line.strip()
            if not line:
                continue
            if line.startswith(";"):
                self.items.append("    " + line)
                continue
            if line.endswith(":"):
                self.items.append(line)
                continue
            i = Ins(line)
            self.items.append(i)
            if i.is_vmem and not optional:
                self.vm.append(tag)
            if i.is_ds and not optional:
                self.lg.append(tag)
            if i.mn == "s_waitcnt":
                m = re.search(r"vmcnt\((\d+)\)", line)
                if m:
                    k = int(m.group(1))
                    self.vm = self.vm[len(self.vm) - k:] if k < len(self.vm) else self.vm
                    if k == 0:
                        self.vm = []
                m = re.search(r"lgkmcnt\((\d+)\)", line)
                if m:
                    k = int(m.group(1))
                    self.lg = self.lg[len(self.lg) - k:] if k < len(self.lg) else self.lg
                    if k == 0:
                        self.lg = []

    def _cnt(self, lst, tags):
        idx = [i for i, t in enumerate(lst) if t in tags]
        if not idx:
            return None
        return len(lst) - 1 - max(idx)

    def wait(self, vm=(), lg=()):
        if isinstance(vm, str):
            vm = (vm,)
        if isinstance(lg, str):
            lg = (lg,)
        parts = []
        n = self._cnt(self.vm, vm)
        if n is not None:
            parts.append("vmcnt(%d)" % min(n, 63))
        n = self._cnt(self.lg, lg)
        if n is not None:
            parts.append("lgkmcnt(%d)" % min(n, 15))
        if parts:
            self("s_waitcnt " + " ".join(parts))

    def render(self):
        out = []
        hist = []
        padded = 0
        for it in self.items:
            if isinstance(it, str):
                out.append(it)
                continue
            req = 0
            dist = 0
            for p in reversed(hist):
                k = need(p, it)
                if k > dist:
                    req = max(req, k - dist)
                dist += p.states()
                if dist >= 14:
                    break
            if req:
                nop = Ins("s_nop %d" % (req - 1))
                out.append("    s_nop %d" % (req - 1))
                hist.append(nop)
                padded += 1
            out.append("    " + it.text)
            hist.append(it)
            if it.mn in ("s_branch", "s_endpgm"):
                hist = []
            hist = hist[-20:]
        self.padded = padded
        return "\n".join(out) + "\n"


def verify(text):
    ins, labels = [], {}
    for line in text.split("\n"):
        t = line.split(";")[0].strip()
        if not t or t.startswith("."):
            continue
        if t.endswith(":"):
            labels[t[:-1]] = len(ins)
            continue
        if not re.match(r"^(s_|v_|ds_|buffer_|global_)", t):
            continue
        ins.append(Ins(t))
    preds = [[] for _ in ins]
    for i, x in enumerate(ins):
        if x.mn in ("s_branch",) or x.mn.startswith("s_cbranch"):
            tgt = labels[x.ops[0]]
            if tgt < len(ins):
                preds[tgt].append(i)
        if x.mn not in ("s_branch", "s_endpgm") and i + 1 < len(ins):
            preds[i + 1].append(i)
    bad = []
    for i, c in enumerate(ins):
        seen = {}
        stack = [(p, 0) for p in preds[i]]
        while stack:
            p, dist = stack.pop()
            if seen.get(p, 99) <= dist:
                continue
            seen[p] = dist
            k = need(ins[p], c)
            if k > dist:
                bad.append("need %d have %d: [%s] -> [%s]" % (k, dist, ins[p].text, c.text))
            d2 = dist + ins[p].states()
            if d2 < 13:
                stack += [(q, d2) for q in preds[p]]
    return bad
```

```python
import sys, os, math, struct
sys.path.insert(0, os.path.dirname(os.path.abspath(__file__)))
from asmlib import Asm, verify

NAME = "recurrent_scan__softmax_full_mha__moe_arch_mod__prompt"

KV_OFF = 0
O_OFF = 0x400000
CT = 0x600000
NONCE_OFF = CT
CAND_OFF = CT + 0x1000
HINT_OFF = CT + 0x2000
GUH_OFF = CT + 0x3000
YF_OFF = CT + 0x6000
ST_OFF = CT + 0x8000
GUF_OFF = CT + 0x20000
KVF_OFF = CT + 0x40000
CLF_OFF = CT + 0x60000
EH_OFF = CT + 0xE0000
GU_OFF = CT + 0x80000
Y_OFF = CT + 0xC0000
DBG_OFF = 0x800000
WS_BASE = 0
WS_BYTES = 0x1000000
FS = 32

L_X = 0
L_RING = 65536
NSLOT = 5
L_GU = 131072
L_DN = 147456
L_MISC = 155648
L_WR = L_MISC
L_M = L_MISC + 1024
L_R = L_M + 256
L_RR = L_R + 256
L_P = L_RR + 256
L_SEL = L_MISC + 2048
L_H = L_SEL + 256
L_UPD = L_MISC + 3072
L_ZERO = L_UPD + 1024
L_LS = L_MISC + 6144
L_INBOX = 98304
LDS_BYTES = 163840

SPIN_MAX = 1 << 16

def f32(x):
    return "0x%08x" % struct.unpack("<I", struct.pack("<f", x))[0]

LOG2E = math.log2(math.e)


def generate(cfg=None):
    cfg = cfg or {}
    STAMP = cfg.get("stamp", False)
    AMP = cfg.get("amp")
    PK = cfg.get("pk", True)
    KFS = 128
    a = Asm()
    stamps = []

    def stamp(name):
        if AMP and name == AMP[0]:
            a("s_memrealtime s[96:97]\ns_waitcnt lgkmcnt(0)")
        if AMP and name == AMP[1]:
            a("s_memrealtime s[98:99]\ns_waitcnt lgkmcnt(0)")
        if STAMP and (name in ("kernarg", "end") or "only" not in cfg or name in cfg["only"]):
            if name not in stamps:
                stamps.append(name)
            i = stamps.index(name)
            a("%s s[68:69]" % ("s_memrealtime" if cfg.get("rt") else "s_memtime"))
            a("s_waitcnt lgkmcnt(0)\ns_mov_b32 s%d, s68" % (85 + i))

    sW, sTB, sHG, sHH, sTH = "s3", "s4", "s5", "s6", "s7"
    SX, SWQ, SWS, SWO, SOUT, SG, SU, SD, SWR = ["s[%d:%d]" % (8 + 4 * i, 11 + 4 * i) for i in range(9)]
    sN, sM0, sRot, sKx, sKw, sT0, sT1, sT2, sT3 = "s44", "s45", "s46", "s47", "s48", "s49", "s50", "s51", "s52"
    sGrp, sCnt, sLB = "s53", "s54", "s55"
    sVM = "s[56:57]"
    sP0, sP1 = "s[58:59]", "s[60:61]"
    sA, sB, sC, sD_, sE, sF = "s62", "s63", "s64", "s65", "s66", "s67"
    sOP, sCLp, sOC, sCLc, sFl, sEHc, sHint, sQ3, sMask, sCW, sFg, sFd = ["s%d" % i for i in range(70, 82)]
    sAux = "s[82:83]"
    sFB, sFJ = "s1", "s0"

    vOut, vL4, vWoA, vWoD, vIdx, vZ, vNn, vFl = 2, 3, 4, 5, 6, 7, 8, 9
    vKV = 10
    vSw, vSr, vLw, vLr, vOw, vOr, vSt, vTok, vUp, vFg, vFd = range(14, 25)
    vIn, vTmp = 25, 26
    XT, OA, OB, QA, QB = 28, 32, 48, 64, 68
    NB = 6
    KVB = lambda b: 72 + 12 * b
    CK = 144
    SA, SB = 150, 166
    T = 182
    vFk = 148
    vHi = 149
    WO = 192

    vr = lambda i, n: "v[%d:%d]" % (i, i + n - 1)

    a.raw("; @launch grid=(256,1,1) block=(512,1,1) lds=%d" % LDS_BYTES)
    a.raw('.amdgcn_target "amdgcn-amd-amdhsa--gfx950"')
    a.raw(".text")
    a.raw(".globl %s_kernel" % NAME)
    a.raw(".p2align 8")
    a.raw(".type %s_kernel,@function" % NAME)
    a.label("%s_kernel" % NAME)

    a("s_cmp_ge_u32 s2, 256\ns_cbranch_scc1 L_end")
    for _ in range(cfg.get("x_sleep0", 0)):
        a("s_sleep 16")
    if AMP:
        a("s_mov_b32 s96, 0\ns_mov_b32 s98, 0\ns_load_dwordx2 s[90:91], s[0:1], 72")
    if AMP and AMP[0] == "start":
        a("s_memrealtime s[96:97]")
    if STAMP:
        a("s_memrealtime s[82:83]")
    def ptr_loads(lst):
        for (srd, off) in lst:
            a("s_load_dwordx2 s[%d:%d], s[0:1], %d" % (srd, srd + 1, off))
    P_FIRST, P_REST = ((8, 0), (12, 8), (40, 32)), ((16, 80), (20, 16), (24, 64), (28, 40), (32, 48), (36, 56))
    ptr_loads(P_FIRST)
    if not cfg.get("split_ka", 1):
        ptr_loads(P_REST)
    vXd, vWd, vXa0, vXa1, vWa, vWa2 = 246, 247, 248, 249, 250, 251
    t0, t1, t2, t3, t4 = 150, 151, 152, 153, 154
    a("v_readfirstlane_b32 %s, v0\nv_and_b32 v0, 63, v0" % sW)
    HYB = cfg.get("hybrid", 0)
    if HYB == 0:
        a("s_and_b32 %s, s2, 7\ns_lshr_b32 %s, s2, 3" % (sHG, sTB))
    elif HYB == 1:
        a("s_and_b32 %s, s2, 3\ns_lshl_b32 %s, %s, 1\ns_bfe_u32 %s, s2, 0x10003\ns_add_u32 %s, %s, %s" % (sHG, sHG, sHG, sT0, sHG, sHG, sT0))
        a("s_and_b32 %s, s2, 4\ns_lshl_b32 %s, %s, 2\ns_lshr_b32 %s, s2, 4\ns_add_u32 %s, %s, %s" % (sTB, sTB, sTB, sT0, sTB, sTB, sT0))
    elif HYB == 2:
        a("s_and_b32 %s, s2, 1\ns_lshl_b32 %s, %s, 2\ns_bfe_u32 %s, s2, 0x20003\ns_add_u32 %s, %s, %s" % (sHG, sHG, sHG, sT0, sHG, sHG, sT0))
        a("s_and_b32 %s, s2, 6\ns_lshl_b32 %s, %s, 2\ns_lshr_b32 %s, s2, 5\ns_add_u32 %s, %s, %s" % (sTB, sTB, sTB, sT0, sTB, sTB, sT0))
    a("s_mov_b32 s10, %d\ns_mov_b32 s11, 0x20000\ns_mov_b32 s18, %d\ns_mov_b32 s19, 0x20000" % (2048 * 1024, WS_BYTES))
    a("v_lshlrev_b32 v1, 4, v0\nv_lshrrev_b32 v%d, 4, v0" % t2)
    if cfg.get("swapw"):
        a("s_xor_b32 %s, %s, 0x100" % (sW, sW))
    a("s_lshr_b32 %s, %s, 6\ns_and_b32 %s, %s, 3\ns_lshl_b32 %s, %s, 10\ns_lshr_b32 %s, %s, 2" % (sW, sW, sHH, sW, sLB, sHH, sTH, sW))
    def code_prefetch():
        PFB = 320
        a("s_lshr_b32 %s, s2, 3" % sT3)
        a("s_getpc_b64 s[60:61]")
        a.label("L_pc")
        a("s_lshl_b32 %s, %s, 2\ns_add_u32 %s, %s, %s\ns_mul_i32 %s, %s, %d" % (sT2, sT3, sT2, sT2, sHH, sT2, sT2, PFB))
        a("s_min_u32 %s, %s, L_end-L_pc-%d" % (sT2, sT2, PFB))
        a("s_add_u32 s60, s60, %s\ns_addc_u32 s61, s61, 0" % sT2)
        for i in range(PFB // 64):
            a("s_load_dword %s, s[60:61], %d" % (sCnt, 64 * i))
    if cfg.get("pfc", 1):
        a("s_cbranch_scc1 L_loader")
        code_prefetch()
        a("s_branch L_compute")
        a.label("L_loader")
    else:
        a("s_cbranch_scc0 L_compute")
    a("s_setprio %d" % cfg.get("ldprio", 1))
    ROT = cfg.get("rot", 2)
    if ROT == 0:
        a("s_add_u32 %s, %s, %s\ns_and_b32 %s, %s, 7" % (sRot, sTB, sHG, sRot, sRot))
    elif ROT == 1:
        a("s_and_b32 %s, %s, 7" % (sRot, sTB))
    elif ROT == 2:
        a("s_lshl_b32 %s, %s, 1\ns_add_u32 %s, %s, %s\ns_and_b32 %s, %s, 7" % (sRot, sHG, sRot, sRot, sTB, sRot, sRot))
    elif ROT == 4:
        a("s_lshl_b32 %s, %s, 1\ns_add_u32 %s, %s, %s\ns_and_b32 %s, %s, 7" % (sRot, sTB, sRot, sRot, sHG, sRot, sRot))
    elif ROT == 5:
        a("s_mov_b32 %s, %s" % (sRot, sHG))
    elif ROT == 3:
        a("s_lshl_b32 %s, %s, 2\ns_add_u32 %s, %s, %s\ns_and_b32 %s, %s, 7" % (sRot, sHG, sRot, sRot, sTB, sRot, sRot))
    a("v_lshrrev_b32 v%d, 3, v0\nv_and_b32 v%d, 7, v0" % (t0, t1))
    a("s_and_b32 %s, %s, 1\ns_lshl_b32 %s, %s, 2" % (sT0, sW, sT0, sT0))
    a("v_xor_b32 v%d, %s, v%d" % (t4, sT0, t1))
    a("s_lshl_b32 %s, %s, 3\ns_add_u32 %s, %s, %s\ns_lshl_b32 %s, %s, 13" % (sT1, sTB, sT1, sT1, sHH, sT1, sT1))
    a("v_xor_b32 v%d, v%d, v%d" % (t3, t4, t2))
    a("v_lshl_add_u32 v%d, v%d, 6, v%d\nv_lshl_add_u32 v%d, v%d, 4, %s" % (vXd, t0, t3, vXd, vXd, sT1))
    a("v_and_b32 v%d, 2, v%d\nv_xor_b32 v%d, v%d, v%d" % (vWd, t0, t4, t4, vWd))
    a("s_mul_i32 %s, %s, %d\ns_lshl_b32 %s, %s, 7\ns_add_u32 %s, %s, %s" % (sT1, sHH, 8 * 3072, sT2, sHG, sT1, sT1, sT2))
    a("v_mul_u32_u24 v%d, 192, v%d\nv_add_lshl_u32 v%d, v%d, v%d, 4\nv_add_u32 v%d, %s, v%d" % (vWd, t0, vWd, vWd, t4, vWd, sT1, vWd))
    a("s_mov_b32 %s, %s\ns_mov_b32 %s, %s" % (sKx, sRot, sKw, sRot))
    a("s_mov_b32 s14, %d\ns_mov_b32 s15, 0x20000\ns_mov_b32 s42, 1024\ns_mov_b32 s43, 0x20000" % (512 * 3072))
    def first_stamp():
        if STAMP:
            a("s_mov_b32 s84, s82")
        stamp("kernarg")
        if STAMP:
            for i in range(86, 101):
                a("s_mov_b32 s%d, s85" % i)
            a("s_mov_b32 s101, 0")
    def ws_window():
        a("s_mov_b32 s82, 0x22222222\ns_mov_b32 s83, 0x22222222")
        if cfg.get("wsoff", WS_BASE):
            a("s_add_u32 s16, s16, %d\ns_addc_u32 s17, s17, 0" % cfg.get("wsoff", WS_BASE))
    a("s_waitcnt lgkmcnt(0)")

    def slot(c):
        return L_RING + (c % NSLOT) * 16384

    def dma_x(c, h):
        if h == 0:
            a("s_lshl_b32 %s, %s, 7\ns_add_u32 m0, %s, %d" % (sT0, sKx, sLB, L_X + c * 8192))
            a("s_add_u32 %s, %s, 1" % (sKx, sKx))
        else:
            a("s_add_u32 m0, %s, %d\ns_add_u32 %s, %s, 32768" % (sLB, L_X + c * 8192 + 4096, sT0, sT0))
        a("buffer_load_dwordx4 v%d, %s, %s offen %s lds" % (vXd, SX, sT0, cfg.get("xmod", "") if c < cfg.get("xmodn", 8) else ""), tag="x%d" % c)
        if h == 0:
            a("s_and_b32 %s, %s, 7" % (sKx, sKx))

    def dma_w(c, m, h):
        if h == 0:
            a("s_mul_i32 %s, %s, %d\ns_add_u32 m0, %s, %d" % (sT1, sKw, 64 * 3072, sLB, slot(c) + 8192 * m))
            a("s_add_u32 %s, %s, %d" % (sT1, sT1, 1024 * (m + 1) if c < 8 else 0))
        else:
            a("s_add_u32 m0, %s, %d\ns_add_u32 %s, %s, %d" % (sLB, slot(c) + 8192 * m + 4096, sT1, sT1, 32 * 3072))
        a("buffer_load_dwordx4 v%d, %s, %s offen %s lds" % (vWd, SWQ, sT1, cfg.get("wmod", "") if c < cfg.get("wmodn", 12) else ""), tag="w%d" % c)
        if h == 1 and (m == 1 or c >= 8):
            a("s_add_u32 %s, %s, 1\ns_and_b32 %s, %s, 7" % (sKw, sKw, sKw, sKw))

    xl = lambda c: [lambda h=h: dma_x(c, h) for h in range(2)]
    wl = lambda c: [lambda m=m, h=h: dma_w(c, m, h) for m in range(2) for h in range(2)]

    ONES, AD = 242, 252

    def init_phase1():
        a("v_and_b32 v%d, 15, v0\nv_lshrrev_b32 v%d, 1, v%d\nv_xor_b32 v%d, v%d, v%d" % (t1, t3, t1, t3, t3, t2))
        a("v_lshlrev_b32 v%d, 7, v%d\nv_lshl_add_u32 v%d, v%d, 4, v%d\nv_xor_b32 v%d, 64, v%d" % (vXa0, t1, vXa0, t3, vXa0, vXa1, vXa0))
        a("v_bfe_u32 v%d, v0, 2, 2\nv_bfe_u32 v%d, v0, 3, 2\nv_and_b32 v%d, 3, v0\nv_xor_b32 v%d, %s, v%d" % (t0, t3, t4, t3, sHH, t3))
        a("v_lshl_add_u32 v%d, v%d, 3, v%d\nv_lshl_add_u32 v%d, v%d, 2, v%d\nv_lshl_add_u32 v%d, v%d, 2, v%d" % (vWa, t2, t0, vWa, vWa, t3, vWa, vWa, t4))
        a("v_lshlrev_b32 v%d, 3, v%d\nv_add_u32 v%d, %d, v%d\nv_add_u32 v%d, 32768, v%d" % (vWa, vWa, vWa, L_RING, vWa, vWa2, vWa))
        a("v_mov_b32 v%d, 0x3f803f80\nv_mov_b32 v%d, v%d\nv_mov_b64 %s, %s" % (ONES, ONES + 1, ONES, vr(ONES + 2, 2), vr(ONES, 2)))

    def init_rest(u0):
        u1, u2, u3 = u0 + 1, u0 + 2, u0 + 3
        L = []
        L.append("s_mov_b32 s22, %d\ns_mov_b32 s23, 0x20000\ns_mov_b32 s26, %d\ns_mov_b32 s27, 0x20000" % (512 * 1024, 2048 * 1024))
        L.append("s_mov_b32 s30, %d\ns_mov_b32 s31, 0x20000\ns_mov_b32 s38, %d\ns_mov_b32 s39, 0x20000" % (512 * 3584, 1792 * 1024))
        L.append("s_mov_b32 s56, 0xffff\ns_mov_b32 s57, 0xffff\ns_lshl_b32 %s, %s, 10" % (sM0, sW))
        L.append("v_lshlrev_b32 v%d, 2, v0\nv_mov_b32 v%d, 0\nv_mov_b32 v%d, 0xdddddddd" % (vL4, vZ, vIdx))
        L.append("v_and_b32 v%d, 11, v0\nv_cmp_eq_u32 vcc, 0, v%d\nv_add_u32 v%d, %s, v1\nv_add_u32 v%d, %d, v%d\nv_cndmask_b32 v%d, 0, v%d, vcc\nv_mov_b32 v%d, v%d"
                 % (u0, u0, vIn, sM0, vIn, L_INBOX, vIn, KVB(0) + 4, ONES, KVB(0) + 5, KVB(0) + 4))
        for b in range(NB):
            L.append("\n".join("v_mov_b64 %s, %s" % (vr(KVB(b) + 4 + i, 2), vr(KVB(0) + 4, 2)) for i in range(0, 8, 2) if b or i))
        L.append("s_lshl_b32 %s, %s, 8\ns_add_u32 %s, %s, %s\nv_lshl_add_u32 v%d, %s, 11, v1" % (sT2, sHG, sT2, sT2, sW, u0, sT2))
        for i in range(4):
            L.append("s_add_u32 %s, %s, %d\ns_and_b32 %s, %s, 3\nv_lshl_add_u32 v%d, %s, 14, v%d" % (sT2, sTB, i, sT2, sT2, vKV + i, sT2, u0))
        L.append("s_lshr_b32 %s, %s, 2\ns_lshl_b32 %s, %s, 16\ns_lshl_b32 %s, %s, 3\ns_add_u32 %s, %s, %s" % (sT2, sTB, sGrp, sT2, sQ3, sHG, sQ3, sQ3, sT2))
        L.append("s_lshl_b32 %s, %s, 2\ns_add_u32 %s, %s, %s\ns_lshl_b32 %s, %s, 12\ns_add_u32 %s, %s, %d\ns_lshl_b32 %s, %s, 7\ns_add_u32 %s, %s, %d"
                 % (sT2, sHG, sT2, sT2, sHH, sFl, sT2, sFl, sFl, KVF_OFF, sHint, sT2, sHint, sHint, HINT_OFF))
        L.append("v_and_b32 v%d, 124, v%d\nv_lshlrev_b32 v%d, 3, v%d\nv_lshlrev_b32 v%d, 5, v%d\nv_and_b32 v%d, 12, v%d" % (vHi, vL4, vFl, vHi, vFk, vHi, vSt, vL4))
        L.append("s_and_b32 %s, %s, 3\ns_lshl_b32 %s, %s, 8\ns_lshl_b32 %s, %s, 13\ns_add_u32 %s, %s, %s" % (sA, sTB, sA, sA, sT2, sW, sT2, sT2, sA))
        L.append("v_lshrrev_b32 v%d, 3, v0\nv_and_b32 v%d, 7, v0\nv_and_b32 v%d, 6, v%d\nv_xor_b32 v%d, v%d, v%d" % (u0, u1, u2, u0, u2, u2, u1))
        L.append("v_lshl_add_u32 v%d, v%d, 6, v%d\nv_lshl_add_u32 v%d, v%d, 4, %s" % (u2, u0, u2, vWoD, u2, sT2))
        L.append("s_lshl_b32 %s, %s, 16\nv_and_b32 v%d, 0x9ff, v%d\nv_and_b32 v%d, 16, v0\nv_lshl_add_u32 v%d, v%d, 5, v%d\nv_add_u32 v%d, %s, v%d"
                 % (sT2, sTH, vWoA, vWa, u2, vWoA, u2, vWoA, vWoA, sT2, vWoA))
        L.append("s_cmp_eq_u32 %s, 2\ns_cselect_b32 %s, 2, 7\ns_cselect_b32 %s, 4, %s\ns_lshr_b32 %s, %s, 1\ns_lshl_b32 %s, %s, 13\ns_add_u32 %s, %s, %d\ns_lshl_b32 %s, %s, 9"
                 % (sW, sT3, sFd, sW, sFd, sFd, sFd, sFd, sFd, sFd, L_GU, sT3, sT3))
        L.append("v_and_b32 v%d, 2, v%d\nv_mul_u32_u24 v%d, %s, v%d\nv_xor_b32 v%d, v%d, v%d\nv_lshl_add_u32 v%d, v%d, 4, v%d\nv_xor_b32 v%d, 64, v%d"
                 % (u2, u0, u0, sT3, u0, u1, u1, u2, vFg, u1, u0, vFd, vFg))
        L.append("s_lshl_b32 %s, %s, 5\nv_xor_b32 v%d, %s, v%d\ns_sub_u32 %s, %s, %d\nv_add_u32 v%d, %s, v%d" % (sT2, sHH, AD, sT2, vWa, sT2, sFd, L_RING, AD, sT2, AD))
        L.append("\n".join("v_xor_b32 v%d, %d, v%d" % (AD + t, t << 5, AD) for t in range(1, 4)))
        L.append("s_lshl_b32 %s, %s, 5\ns_add_u32 %s, %s, %s\ns_lshl_b32 %s, %s, 1\ns_add_u32 %s, %s, %s" % (sT2, sHG, sT2, sT2, sTB, sT3, sT2, sT3, sT3, sTH))
        L.append("s_lshl_b32 %s, %s, 12\ns_add_u32 %s, %s, %s\ns_add_u32 %s, %s, %d" % (sOP, sT3, sOP, sOP, sLB, sOP, sOP, O_OFF))
        L.append("s_lshl_b32 %s, %s, 5\ns_add_u32 %s, %s, %s\ns_lshl_b32 %s, %s, 2\ns_add_u32 %s, %s, %d" % (sCLp, sT3, sCLp, sCLp, sHH, sCLp, sCLp, sCLp, sCLp, CLF_OFF))
        L.append("s_lshl_b32 %s, %s, 6\ns_add_u32 %s, %s, %s\ns_lshl_b32 %s, %s, 12\ns_add_u32 %s, %s, %d" % (sT3, sW, sT3, sT3, sQ3, sOC, sT3, sOC, sOC, O_OFF))
        L.append("s_lshl_b32 %s, %s, 7\ns_add_u32 %s, %s, %d\ns_lshr_b32 %s, %s, 1\ns_lshl_b32 %s, %s, 9\ns_add_u32 %s, %s, %d"
                 % (sCLc, sT3, sCLc, sCLc, CLF_OFF, sEHc, sT3, sEHc, sEHc, sEHc, sEHc, EH_OFF))
        L.append("v_and_b32 v%d, 31, v0\nv_lshl_add_u32 v%d, %s, 5, v%d\nv_and_b32 v%d, 32, v0\nv_lshl_add_u32 v%d, %s, 6, v%d" % (u0, vTok, sQ3, u0, u1, vUp, sW, u1))
        L.append("v_lshrrev_b32 v%d, 1, v%d\nv_lshl_add_u32 v%d, v%d, 10, v%d\nv_add_u32 v%d, %s, v%d" % (u1, vUp, vOut, vTok, u1, vOut, sA, vOut))
        L.append("v_mov_b64 %s, -1\nv_mov_b64 %s, -1\nv_lshl_add_u32 v%d, %s, 12, v1" % (vr(XT, 2), vr(XT + 2, 2), vOw, sW))
        L.append("v_and_b32 v%d, 0x300, v1\nv_add_u32 v%d, v%d, v1" % (u0, vOr, u0))
        L.append("v_lshl_add_u32 v%d, %s, 11, v1\nv_add_u32 v%d, %d, v%d\nv_xor_b32 v%d, 8192, v%d" % (vSr, sW, vSr, L_GU, vSr, vSw, vSr))
        L.append("v_lshl_add_u32 v%d, %s, 8, v%d\nv_add_u32 v%d, %d, v%d\nv_xor_b32 v%d, 1024, v%d" % (vLr, sW, vL4, vLr, L_LS, vLr, vLw, vLr))
        return L

    tag_load = "s_add_u32 s58, s16, %d\ns_addc_u32 s59, s17, 0\ns_load_dword %s, s[58:59], 0" % (NONCE_OFF, sN)
    tag_final = "s_mul_i32 %s, %s, 1664525\ns_add_u32 %s, %s, 1013904223\nv_mov_b32 v%d, %s" % (sN, sN, sN, sN, vNn, sN)
    ffn_unit = "s_lshr_b32 %s, %s, 3\ns_lshl_b32 %s, %s, 2\ns_add_u32 %s, %s, %s\ns_and_b32 %s, %s, 7" % (sT2, sTB, sFB, sHG, sFB, sFB, sT2, sFJ, sTB)
    if cfg.get("x_ffnpar") is not None:
        ffn_unit += "\ns_bitcmp%d_b32 %s, 0\ns_cselect_b32 %s, 31, %s" % (cfg["x_ffnpar"], sHG, sFB, sFB)

    for f in xl(0) + wl(0)[:2]:
        f()
    if cfg.get("split_ka", 1):
        ptr_loads(P_REST)
    for f in wl(0)[2:]:
        f()
    a("s_lshl_b32 %s, %s, 1\ns_add_u32 %s, %s, %s" % (sT2, sHH, sT2, sT2, sRot))
    a("v_add_u32 v%d, %s, v%d\nv_and_b32 v%d, 7, v%d\nv_lshlrev_b32 v%d, 7, v%d\nv_lshl_add_u32 v%d, v%d, 4, v%d" % (t3, sT2, t0, t3, t3, t3, t3, t3, t1, t3))
    a("s_lshl_b32 %s, %s, 8\ns_add_u32 m0, %s, %d\ns_mov_b64 exec, 0xffff" % (sT2, sHH, sT2, L_WR))
    a("buffer_load_dwordx4 v%d, %s, 0 offen lds" % (t3, SWR), tag="w0")
    a("s_mov_b64 exec, -1")
    for f in xl(1):
        f()
    a("s_waitcnt lgkmcnt(0)")
    first_stamp()
    ws_window()
    if not cfg.get("pfc", 1):
        code_prefetch()
    a(tag_load)
    a(ffn_unit)
    a("s_lshl_b32 %s, %s, 9\ns_add_u32 %s, %s, %d\ns_lshr_b32 %s, %s, 3\ns_add_u32 %s, %s, %s" % (sT2, sHG, sT2, sT2, HINT_OFF, sT3, sLB, sT2, sT2, sT3))
    a("s_lshl_b32 %s, %s, 7\ns_add_u32 %s, %s, %d" % (sT3, sFB, sT3, sT3, GUH_OFF))
    a("s_buffer_load_dword %s, %s, %s\ns_buffer_load_dword %s, %s, %s offset:64\ns_buffer_load_dword %s, %s, %s" % (sCnt, SWS, sT2, sCnt, SWS, sT2, sCnt, SWS, sT3))
    init_phase1()

    def tr_read(dst, addr, off, tag, second=512, optional=False):
        a("ds_read_b64_tr_b16 %s, v%d offset:%d" % (vr(dst, 2), addr, off), tag=tag, optional=optional)
        a("ds_read_b64_tr_b16 %s, v%d offset:%d" % (vr(dst + 2, 2), addr, off + second), tag=tag, optional=optional)

    def ring_addr(off):
        off -= L_RING
        return (vWa, off) if off < 32768 else (vWa2, off - 32768)

    def mfma16(d, A, B, first):
        a("v_mfma_f32_16x16x32_bf16 %s, %s, %s, %s" % (vr(d, 4), vr(A, 4), vr(B, 4), "0" if first else vr(d, 4)))

    def bf16_round(dst, src):
        a("v_cvt_pk_bf16_f32 v%d, v%d, v%d\nv_lshlrev_b32 v%d, 16, v%d" % (dst, src, src, dst, dst))

    def interleave(xs, ys):
        xs, ys = list(xs), list(ys)
        while xs or ys:
            if xs:
                xs.pop(0)()
            if ys:
                ys.pop(0)()

    def read_tok_stats(MK, RK, tmp, tag):
        a("v_and_b32 v%d, 15, v0\nv_lshlrev_b32 v%d, 2, v%d\nv_add_u32 v%d, %d, v%d" % (tmp, tmp, tmp, tmp, L_M, tmp))
        a("ds_read2_b32 %s, v%d offset0:0 offset1:16\nds_read2_b32 %s, v%d offset0:32 offset1:48" % (vr(MK, 2), tmp, vr(MK + 2, 2), tmp), tag=tag)
        a("ds_read2_b32 %s, v%d offset0:64 offset1:80\nds_read2_b32 %s, v%d offset0:96 offset1:112" % (vr(RK, 2), tmp, vr(RK + 2, 2), tmp), tag=tag)

    def norm_tok(acc, cs, MK, RK, tiles):
        for tt in tiles:
            if PK:
                s_ = tt & 1
                for r in (0, 2):
                    a("v_pk_fma_f32 %s, %s, %s, %s op_sel:[%d,0,0] op_sel_hi:[%d,1,1] neg_lo:[1,0,0] neg_hi:[1,0,0]"
                      % (vr(acc + 4 * tt + r, 2), vr(MK + (tt & 2), 2), vr(cs + r, 2), vr(acc + 4 * tt + r, 2), s_, s_))
            else:
                for r in range(4):
                    a("v_fma_f32 v%d, -v%d, v%d, v%d" % (acc + 4 * tt + r, MK + tt, cs + r, acc + 4 * tt + r))
        for tt in tiles:
            if PK:
                s_ = tt & 1
                for r in (0, 2):
                    a("v_pk_mul_f32 %s, %s, %s op_sel:[%d,0] op_sel_hi:[%d,1]" % (vr(acc + 4 * tt + r, 2), vr(RK + (tt & 2), 2), vr(acc + 4 * tt + r, 2), s_, s_))
            else:
                for r in range(4):
                    a("v_mul_f32 v%d, v%d, v%d" % (acc + 4 * tt + r, RK + tt, acc + 4 * tt + r))

    def pack(dst, acc):
        for i in range(4):
            a("v_cvt_pk_bf16_f32 v%d, v%d, v%d" % (dst + i, acc + 2 * i, acc + 2 * i + 1))

    def swap(dst):
        a("v_permlane16_swap_b32 v%d, v%d\nv_permlane16_swap_b32 v%d, v%d" % (dst, dst + 2, dst + 1, dst + 3))

    grpwaits = []
    KVM = cfg.get("kvmod", "sc1")
    KSM = cfg.get("ksmod", "sc1")
    def kv_load(s, optional=False, sfx=""):
        b, i = s % NB, s & 3
        if i == 0:
            lbl = "L_grp%d%s" % (s >> 2, sfx)
            grpwaits.append((lbl, s >> 2))
            a("s_and_b32 %s, %s, 0x%x\ns_cbranch_scc1 %s" % (sT0, sMask, 0xf << (s & ~3), lbl))
            a.label(lbl + "_ret")
            a("s_add_u32 %s, %s, 0x10000\ns_and_b32 %s, %s, 0x7ffff" % (sGrp, sGrp, sGrp, sGrp))
        tg = "t%d" % s
        a("buffer_load_dwordx4 %s, v%d, %s, %s offen %s" % (vr(KVB(b), 4), vKV + i, SWS, sGrp, KVM), tag=tg, optional=optional)
        a("s_mov_b64 exec, %s" % sVM)
        a("buffer_load_dwordx4 %s, v%d, %s, %s offen offset:1024 %s" % (vr(KVB(b) + 4, 4), vKV + i, SWS, sGrp, KVM), tag=tg, optional=optional)
        a("buffer_load_dwordx4 %s, v%d, %s, %s offen offset:1280 %s" % (vr(KVB(b) + 8, 4), vKV + i, SWS, sGrp, KVM), tag=tg, optional=optional)
        a("s_mov_b64 exec, -1")

    EARLY = cfg.get("early", [1, 2, 3])
    def early_loads(optional=False):
        for t in EARLY:
            kv_load(t, optional)

    a("; ======== loader waves")
    XSF, AUX, GR, AX = 150, 166, 182, 186
    vSa0, vSa1, vAa = 190, 191, 192
    a("v_lshl_add_u32 v%d, %s, 11, v%d\nv_xor_b32 v%d, 64, v%d" % (vSa0, sHH, vXa0, vSa1, vSa0))
    a("v_lshrrev_b32 v%d, 4, v0\nv_lshlrev_b32 v%d, 4, v%d\nv_add_u32 v%d, %d, v%d" % (vAa, vAa, vAa, vAa, L_WR, vAa))
    a("v_and_b32 v193, 3, v0\nv_cmp_eq_u32 vcc, 0, v193\nv_cndmask_b32 v%d, 0, v%d, vcc" % (AUX, ONES))
    a("v_mov_b32 v%d, v%d" % (AUX + 1, AUX))
    for i in range(2, 16, 2):
        a("v_mov_b64 %s, %s" % (vr(AUX + i, 2), vr(AUX, 2)))
    LA = cfg.get("la", 2)
    stamp("linit")
    if LA == 3:
        pro = xl(2) + xl(3) + wl(1) + xl(4) + wl(2)
        STAT = {0: [0], 1: [1, 2], 2: [3, 4], 3: [5], 4: [6], 5: [7]}
        plan = dict((c, (xl(c + 5) if c + 5 < 8 else []) + wl(c + 3)) for c in range(8))
        plan[7] = plan[6][2:] + plan[7] + wl(11)
        plan[6] = plan[6][:2]
    elif LA == 2:
        pro = wl(1) + xl(2)
        STAT = {1: [0, 1], 2: [2, 3], 3: [4], 4: [5], 5: [6], 6: [7]} if cfg.get("statlate", 0) else {0: [0], 1: [1], 2: [2, 3], 3: [4], 4: [5], 5: [6], 6: [7]}
        plan = dict((c, xl(c + 3) + wl(c + 2)) for c in range(5))
        w8, w9 = wl(8), wl(9)
        k6 = cfg.get("k6", 2)
        plan[5] = wl(7) + w8[:2]
        plan[6] = (w8[2:] + w9)[:k6]
        plan[7] = (w8[2:] + w9)[k6:] + wl(10) + wl(11)
    elif LA == 1:
        pro = wl(1) + xl(2)
        STAT = {0: [0], 1: [1], 2: [2, 3], 3: [4], 4: [5, 6], 5: [7]}
        w8, w9 = wl(8), wl(9)
        plan = {0: xl(3) + wl(2), 1: xl(4) + wl(3), 2: xl(5) + xl(6) + wl(4), 3: xl(7) + wl(5), 4: wl(6), 5: wl(7) + w8[:2], 6: w8[2:], 7: w9 + wl(10) + wl(11)}
    elif LA == 4:
        pro = wl(1)
        STAT = {1: [0, 1], 2: [2, 3], 4: [4, 5], 5: [6, 7]}
        w8, w9 = wl(8), wl(9)
        plan = {0: xl(2) + xl(3) + wl(2), 1: wl(3), 2: xl(4) + xl(5) + wl(4), 3: xl(6) + xl(7) + wl(5), 4: wl(6), 5: wl(7) + w8[:2], 6: w8[2:], 7: w9 + wl(10) + wl(11)}
    elif LA == 5:
        pro = xl(2) + xl(3) + wl(1)
        STAT = {1: [0, 1], 2: [2, 3], 3: [4, 5], 4: [6, 7]}
        w8, w9 = wl(8), wl(9)
        plan = {0: wl(2), 1: xl(4) + xl(5) + xl(6) + xl(7) + wl(3), 2: wl(4), 3: wl(5), 4: wl(6), 5: wl(7) + w8[:2], 6: w8[2:], 7: w9 + wl(10) + wl(11)}
    rest = init_rest(200)
    NE = cfg.get("nearly_init", 8)
    for t in rest[:NE]:
        a(t)
    rest = rest[NE:]
    for f in pro:
        f()
    stamp("lpro")
    nst = 0
    pend = []
    def stat_final():
        L = []
        L.append("s_mov_b32 s58, 0x44444444\ns_mov_b32 s59, 0x44444444\ns_mov_b32 s60, 0x88888888\ns_mov_b32 s61, 0x88888888")
        L.append("v_and_b32 v199, 15, v0\nv_lshl_add_u32 v199, %s, 4, v199\nv_lshlrev_b32 v199, 2, v199\nv_add_u32 v199, %d, v199" % (sHH, L_M))
        L.append("v_cndmask_b32 v194, v%d, v%d, %s\nv_cndmask_b32 v194, v194, v%d, %s\nv_cndmask_b32 v194, v194, v%d, %s"
                 % (GR, GR + 1, sAux, GR + 2, sP0, GR + 3, sP1))
        L.append("v_mul_f32 v195, %s, v%d\nv_mul_f32 v194, %s, v194" % (f32(1 / 512), AX, f32(1 / 512)))
        L.append("v_fma_f32 v194, -v195, v195, v194\nv_max_f32 v194, 0, v194")
        L.append("v_cvt_pk_bf16_f32 v196, v195, v194\nv_lshlrev_b32 v195, 16, v196\nv_and_b32 v194, 0xffff0000, v196")
        L.append("v_add_f32 v194, %s, v194\nv_cvt_pk_bf16_f32 v194, v194, v194\nv_lshlrev_b32 v194, 16, v194" % f32(1e-5))
        L.append("v_sqrt_f32 v194, v194\nv_fma_f32 v198, -v195, %s, v%d\nv_cvt_pk_bf16_f32 v194, v194, v194\nv_lshlrev_b32 v194, 16, v194" % (sCW, AX + 1))
        L.append("v_rcp_f32 v197, v194\nv_lshrrev_b32 v196, 16, v195\nv_or_b32 v196, v196, v194")
        L.append("v_mul_f32 v198, v198, v197\nv_cvt_pk_bf16_f32 v198, v198, v198\nv_lshlrev_b32 v198, 16, v198")
        L.append("s_mov_b32 s58, 0x00f0000f\ns_mov_b32 s59, 0xf0000f00\ns_mov_b64 exec, s[58:59]\n"
                 "ds_write2_b32 v199, v195, v197 offset0:0 offset1:64\nds_write2_b32 v199, v198, v196 offset0:128 offset1:192\ns_mov_b64 exec, -1")
        return [lambda t=t: a(t) for t in L]
    for c in range(8):
        a("; ---- stage chunk %d" % c)
        a.wait(vm=["w%d" % c, "x%d" % c] + ["x%d" % k for k in STAT.get(c, [])])
        a("s_barrier")
        if c in (0, 7) and AMP:
            stamp("chunk%d" % c)
        dm = plan[c]
        work = []
        if c == 7:
            work.append(lambda: read_tok_stats(230, 234, 193, "mk"))
        for i in range(len(pend)):
            def two(i=i, first=(nst == 0)):
                if first:
                    a("s_waitcnt lgkmcnt(0)")
                a.wait(lg="st")
                mfma16(GR, XSF + 4 * i, XSF + 4 * i, first)
                mfma16(AX, AUX + 4 * i, XSF + 4 * i, first)
            work.append(two)
            nst += 1
        if c == 2:
            work.append(lambda: a("v_lshlrev_b32 v198, 16, v194\nv_and_b32 v194, 0xffff0000, v194\nv_add_f32 v198, v198, v194"))
            for i in range(1, 4):
                work.append(lambda i=i: a("v_lshlrev_b32 v194, 16, v%d\nv_and_b32 v%d, 0xffff0000, v%d\nv_add_f32 v198, v198, v194\nv_add_f32 v198, v198, v%d" % (194 + i, 194 + i, 194 + i, 194 + i)))
        if c in (3, 4):
            pats = ("quad_perm:[1,0,3,2] row_mask:0xf", "quad_perm:[2,3,0,1] row_mask:0xf", "row_half_mirror row_mask:0xf",
                    "row_mirror row_mask:0xf", "row_bcast:15 row_mask:0xa", "row_bcast:31 row_mask:0xc")[3 * (c - 3):3 * (c - 2)]
            work.append(lambda pats=pats: a("\n".join("v_add_f32_dpp v198, v198, v198 %s bank_mask:0xf" % p for p in pats)))
        if c == 5:
            work.append(lambda: a("v_readlane_b32 %s, v198, 63" % sCW))
        pend = [(sc, ks) for sc in STAT.get(c, []) for ks in range(2)]
        if cfg.get("x_nostat") and c < 5:
            pend = []
        SO = 8 if c == 6 else 0
        if pend:
            tg = "st2" if c == 6 else "st"
            def xr(pend=pend):
                for i, (sc, ks) in enumerate(pend):
                    a("ds_read_b128 %s, v%d offset:%d" % (vr(XSF + SO + 4 * i, 4), vSa0 if ks == 0 else vSa1, L_X + sc * 8192), tag=tg)
            def ar(pend=pend):
                a("s_mov_b64 exec, %s" % sAux)
                for i, (sc, ks) in enumerate(pend):
                    a("ds_read_b128 %s, v%d offset:%d" % (vr(AUX + SO + 4 * i, 4), vAa, sc * 128 + ks * 64), tag=tg)
                a("s_mov_b64 exec, -1")
            if c == 6:
                xr(); ar()
            else:
                work += [xr, ar]
        if c == 0:
            work.append(lambda: a("v_add_u32 v193, %d, v1\nds_read_b128 v[194:197], v193" % L_WR, tag="st"))
        if c == 6:
            for i in range(len(pend)):
                def two2(i=i):
                    a.wait(lg="st2")
                    mfma16(GR, XSF + SO + 4 * i, XSF + SO + 4 * i, False)
                    mfma16(AX, AUX + SO + 4 * i, XSF + SO + 4 * i, False)
                work.append(two2)
            pend = []
            work += stat_final()
        if c == 2:
            work.append(lambda: a(tag_final))
        if c < 6:
            n_ = -(-len(rest) // (6 - c))
            work += [lambda t=t: a(t) for t in rest[:n_]]
            rest = rest[n_:]
        gaps = max(1, len(dm) - 1)
        for k, f in enumerate(dm):
            f()
            if k < gaps:
                n_ = -(-len(work) // (gaps - k))
                for g_ in work[:n_]:
                    g_()
                work = work[n_:]
        assert not work
        if c >= 6:
            a("s_waitcnt lgkmcnt(0)")
    a("; ---- Q projection")
    a("s_setprio %d" % cfg.get("qprio", 0))
    MKq, RKq, aQ, cQ = 230, 234, 210, 226
    QW = lambda n: 198 + 4 * (n % 3)
    XSETS = (150, 166, 182, 32, 48)
    NXS = len(XSETS)
    QX = lambda n: XSETS[n % NXS] if n < 2 * NXS else XSETS[(n - 2 * NXS) % 3]
    def qx_reads(n):
        c, ks = n >> 1, n & 1
        return [lambda tt=tt: a("ds_read_b128 %s, v%d offset:%d" % (vr(QX(n) + 4 * tt, 4), vXa0 if ks == 0 else vXa1, L_X + c * 8192 + tt * 2048), tag="qx%d" % n) for tt in range(4)]
    def qw_read(n):
        c, ks = n >> 1, n & 1
        ad, off = ring_addr(slot(8 + (c >> 1)) + (c & 1) * 8192 + ks * 4096)
        return lambda: tr_read(QW(n), ad, off, "qw%d" % n)
    for n in range(NXS):
        for f in qx_reads(n):
            f()
    for i in range(4):
        a("v_mul_f32 v%d, %s, v%d" % (RKq + i, f32(0.25 * LOG2E), RKq + i))
    a("s_waitcnt lgkmcnt(0)")
    a.wait(vm=("w8", "w9"))
    a("s_barrier")
    stamp("B8")
    qw_read(0)()
    qw_read(1)()
    xq = [(n, f) for n in range(NXS, 16) for f in qx_reads(n)]
    zq = list(range(0, 32, 2))
    for n in range(16):
        if n == 6:
            stamp("preB9")
            a.wait(vm=("w10", "w11"))
            a("s_barrier")
            stamp("B9")
        a.wait(lg=("qw%d" % n, "qx%d" % n))
        mf = [lambda: mfma16(cQ, QW(n), ONES, n == 0)]
        mf += [lambda tt=tt: mfma16(aQ + 4 * tt, QW(n), QX(n) + 4 * tt, n == 0) for tt in range(4)]
        rd = [qw_read(n + 2)] if n + 2 < 16 else []
        def free(m):
            prev = max(k for k in range(m) if QX(k) == QX(m))
            return prev < n
        k = 0
        while xq and free(xq[0][0]) and (k < 3 or xq[0][0] <= n + 2) and k < 4:
            rd.append(xq.pop(0)[1]); k += 1
        interleave(mf, rd)
        if n >= 2 * NXS:
            for i in zq[:3]:
                a("v_mov_b64 %s, 0" % vr(OA + i, 2))
            zq = zq[3:]
    assert not xq and not zq
    stamp("qmf")
    def inbox_kv():
        a("ds_read_b128 %s, v%d" % (vr(KVB(0), 4), vIn))
        a("s_mov_b64 exec, %s" % sVM)
        a("ds_read_b128 %s, v%d offset:8192\nds_read_b128 %s, v%d offset:8448" % (vr(KVB(0) + 4, 4), vIn, vr(KVB(0) + 8, 4), vIn))
        a("s_mov_b64 exec, -1")
    FAST = cfg.get("faststart", 0)
    PRIO = dict((int(k), v_) for k, v_ in cfg.get("prio", {"0": [3, 2], "24": [1, None], "30": [None, 0]}).items())
    PRIO0 = PRIO.pop(0) if FAST else None
    if FAST:
        inbox_kv()
    a("v_xor_b32 v%d, 4096, v%d" % (vTmp, vIn))
    a("s_lshl_b32 %s, %s, 2\ns_add_u32 %s, %s, %d\nv_mov_b32 v%d, %s" % (sT0, sHH, sT0, sT0, L_SEL + 64, vTmp + 1, sT0))
    norm_tok(aQ, cQ, MKq, RKq, range(4))
    pack(QA, aQ)
    pack(QB, aQ + 8)
    swap(QA)
    swap(QB)
    a("ds_write_b128 v%d, %s\nds_write_b128 v%d, %s offset:8192" % (vTmp, vr(QB, 4), vTmp, vr(QA, 4)))
    a("s_waitcnt lgkmcnt(0)")
    stamp("qend")
    if FAST:
        a("v_mfma_f32_32x32x16_bf16 %s, %s, %s, 0" % (vr(SA, 16), vr(KVB(0), 4), vr(QA, 4)))
    a("s_barrier")
    stamp("B10")
    a("ds_read_b32 v%d, v%d" % (vTmp + 1, vTmp + 1), tag="rdy")
    if FAST:
        a("s_setprio %d\ns_nop 7\ns_branch L_att2" % PRIO0[1])
    else:
        inbox_kv()
        a.wait(lg="rdy")
        a("v_readfirstlane_b32 %s, v%d\ns_and_b32 %s, %s, 0xf\ns_cbranch_scc1 L_att" % (sMask, vTmp + 1, sT0, sMask))
        early_loads()
        a("s_branch L_att")

    a.vm, a.lg = [], []
    a.label("L_compute")
    if cfg.get("split_ka", 1):
        ptr_loads(P_REST)
    init_phase1()
    sFo, sHo = sKx, sKw
    crest = init_rest(238) + [ffn_unit]
    crest.append("s_lshl_b32 %s, %s, 7\ns_add_u32 %s, %s, %s\ns_lshl_b32 %s, %s, 2\ns_add_u32 %s, %s, %s" % (sFo, sTB, sFo, sFo, sFl, sHo, sTB, sHo, sHo, sHint))
    crest = [t for piece in crest for t in piece.split("\n")]
    NC = cfg.get("ncearly", 100)
    if cfg.get("pfq", 1):
        k0 = cfg.get("pfq_at", 0)
        for t in crest[:k0]:
            a(t)
        a("s_waitcnt lgkmcnt(0)")
        a("s_mov_b32 s14, %d\ns_mov_b32 s15, 0x20000" % (512 * 3072))
        a("s_lshl_b32 %s, %s, 2\ns_add_u32 %s, %s, %s\ns_mul_i32 %s, %s, %d\ns_lshl_b32 %s, %s, 7\ns_add_u32 %s, %s, %s"
          % (sT0, sTB, sT0, sT0, sHH, sT0, sT0, 4 * 3072, sT1, sHG, sT0, sT0, sT1))
        for i in range(8):
            a("s_buffer_load_dword %s, %s, %s offset:%d" % (sCnt, SWQ, sT0, (i >> 1) * 3072 + (i & 1) * 64))
        crest, NC = crest[k0:], NC - k0
    for t in crest[:NC]:
        a(t)
    crest = crest[NC:]
    assert len(crest) >= 8
    a("s_waitcnt lgkmcnt(0)")
    first_stamp()
    ws_window()
    CPER = cfg.get("cper", 1)
    FR = lambda n: (150, 174, 32)[n % 3]
    aK, aV, cK, cV = 198, 214, 230, 234
    MK, RK = 64, 68
    def kv_reads(n):
        c, ks = n >> 1, n & 1
        def w_(m):
            ad, off = ring_addr(slot(c) + m * 8192 + ks * 4096)
            return lambda: tr_read(FR(n) + 4 * m, ad, off, "f%dw%d" % (n, m))
        def x_(tt):
            return lambda: a("ds_read_b128 %s, v%d offset:%d" % (vr(FR(n) + 8 + 4 * tt, 4), vXa0 if ks == 0 else vXa1, L_X + c * 8192 + tt * 2048), tag="f%dx%d" % (n, tt))
        return [w_(0), x_(0), w_(1), x_(1), x_(2), x_(3)]
    def kv_mfmas(n):
        f = FR(n)
        def g(d, A, B, tags):
            def h():
                a.wait(lg=["f%d%s" % (n, t) for t in tags])
                mfma16(d, A, B, n == 0)
                for t in crest[:CPER if (n & 1) else 2 * CPER]:
                    a(t)
                del crest[:CPER if (n & 1) else 2 * CPER]
            return h
        out = [g(cK, f, ONES, ["w0"]), g(aK, f, f + 8, ["x0"]), g(cV, ONES, f + 4, ["w1"]), g(aV, f + 8, f + 4, [])]
        for tt in range(1, 4):
            out += [g(aK + 4 * tt, f, f + 8 + 4 * tt, ["x%d" % tt]), g(aV + 4 * tt, f + 8 + 4 * tt, f + 4, [])]
        return out
    for c in range(8):
        a("; ---- K/V chunk %d" % c)
        if "only" in cfg:
            stamp("pre%d" % c)
        a("s_barrier")
        if c in (0, 7) or "only" in cfg:
            stamp("chunk%d" % c)
        rd = kv_reads(2 * c) + kv_reads(2 * c + 1)
        if cfg.get("x_nord") and c < 7:
            rd = []
        if cfg.get("x_nomf") and c < 7:
            for f in rd:
                f()
            for t in crest:
                a(t)
            del crest[:]
            a("s_waitcnt lgkmcnt(0)")
            continue
        npre = cfg.get("npre", 3)
        for f in rd[:npre]:
            f()
        interleave((kv_mfmas(2 * c - 1) if c > 0 else []), rd[npre:])
        if c == 7:
            read_tok_stats(MK, RK, vTmp, "mk")
        for f in kv_mfmas(2 * c):
            f()
        if c < 7:
            a("s_waitcnt lgkmcnt(0)")
    assert not crest, len(crest)
    MV, RV = 174, 32
    a("v_lshrrev_b32 v%d, 4, v0\nv_lshlrev_b32 v%d, 4, v%d\nv_add_u32 v%d, %d, v%d" % (vTmp, vTmp, vTmp, vTmp, L_M, vTmp))
    a("s_waitcnt lgkmcnt(0)")
    mvr = [lambda tt=tt: a("ds_read_b128 %s, v%d offset:%d" % (vr(MV + 4 * tt, 4), vTmp, tt * 64), tag="mv") for tt in range(4)]
    mvr += [lambda tt=tt: a("ds_read_b128 %s, v%d offset:%d" % (vr(RV + 4 * tt, 4), vTmp, 256 + tt * 64), tag="mv") for tt in range(4)]
    order = kv_mfmas(15)
    order = [order[i] for i in (0, 1, 4, 6, 8, 2, 3, 5, 7, 9)]
    interleave(order, mvr)
    B8AT = cfg.get("b8at", 2)
    def b8(k):
        if B8AT == k:
            a("s_barrier")
            stamp("B8")
    b8(0)
    a("; ---- K/V epilogue")
    K0, K1 = KVB(0), KVB(1)
    VI = 190
    a("s_add_u32 %s, %s, 8192" % (sT0, sGrp))
    norm_tok(aK, cK, MK, RK, range(4))
    pack(K0, aK)
    pack(K1, aK + 8)
    swap(K0)
    swap(K1)
    a("buffer_store_dwordx4 %s, v%d, %s, %s offen %s" % (vr(K0, 4), vKV, SWS, sGrp, KSM), tag="kvst")
    a("buffer_store_dwordx4 %s, v%d, %s, %s offen %s" % (vr(K1, 4), vKV, SWS, sT0, KSM), tag="kvst")
    b8(1)
    a.wait(lg="mv")
    for i in range(0, 16, 2 if PK else 1):
        if PK:
            a("v_pk_fma_f32 %s, %s, %s, %s neg_lo:[1,0,0] neg_hi:[1,0,0]" % (vr(aV + i, 2), vr(MV + i, 2), vr(cV, 2), vr(aV + i, 2)))
        else:
            a("v_fma_f32 v%d, -v%d, v%d, v%d" % (aV + i, MV + i, cV, aV + i))
    for i in range(0, 16, 2 if PK else 1):
        if PK:
            a("v_pk_mul_f32 %s, %s, %s" % (vr(aV + i, 2), vr(RV + i, 2), vr(aV + i, 2)))
        else:
            a("v_mul_f32 v%d, v%d, v%d" % (aV + i, RV + i, aV + i))
    pack(VI, aV)
    pack(VI + 4, aV + 8)
    swap(VI)
    swap(VI + 4)
    a("buffer_store_dwordx4 %s, v%d, %s, %s offen offset:1024 %s" % (vr(VI, 4), vKV, SWS, sGrp, KSM), tag="kvst")
    a("buffer_store_dwordx4 %s, v%d, %s, %s offen offset:1024 %s" % (vr(VI + 4, 4), vKV, SWS, sT0, KSM), tag="kvst")
    if cfg.get("x_dbl"):
        for (r, so, off) in ((K0, sGrp, 0), (K1, sT0, 0), (VI, sGrp, 1024), (VI + 4, sT0, 1024)):
            a("buffer_store_dwordx4 %s, v%d, %s, %s offen offset:%d sc1" % (vr(r, 4), vKV, SWS, so, off), tag="kv2")
    stamp("kvstore")
    a(tag_load)
    b8(2)
    a("v_xor_b32 v%d, 4096, v%d\nv_add_u32 v%d, %d, v%d" % (vTmp, vIn, vTmp + 1, L_SEL, vL4))
    a("ds_write_b128 v%d, %s\nds_write_b128 v%d, %s offset:8192" % (vTmp, vr(K1, 4), vTmp, vr(VI + 4, 4)))
    a("ds_write_b32 v%d, v%d\nds_write_b32 v%d, v%d offset:%d\nds_write_b32 v%d, v%d offset:%d"
      % (vTmp + 1, vZ, vTmp + 1, vZ, L_ZERO - L_SEL, vTmp + 1, vZ, L_ZERO - L_SEL + 256))
    for i in range(4):
        a("v_mov_b32 v%d, v%d" % (K0 + 4 + i, VI + i))
    for i in range(0, 32, 2):
        a("v_mov_b64 %s, 0" % vr(OA + i, 2))
    for i in range(4):
        a("v_permlane16_swap_b32 v%d, v%d" % (K0 + 4 + i, K0 + 8 + i))
    a("s_waitcnt lgkmcnt(0)")
    a(tag_final)
    a("s_and_b32 %s, %s, 7\ns_xor_b32 %s, %s, %s\ns_xor_b32 %s, %s, 1\ns_or_b32 %s, %s, %s" % (sE, sTB, sE, sE, sHG, sT1, sW, sE, sE, sT1))
    a("s_cbranch_scc0 L_cand")
    a("s_barrier")
    a.label("L_cand_ret")
    a.wait(vm="kvst")
    stamp("kvack")
    a("s_mov_b64 exec, 1")
    a("buffer_store_dword v%d, v%d, %s, %s offen" % (vNn, vZ, SWS, sHo), optional=True)
    a("s_mov_b64 exec, -1")
    hint_load = lambda r: "buffer_load_dword v%d, v%d, %s, %s offen sc1" % (r, vHi, SWS, sHint)
    flag_load = lambda r: "buffer_load_dword v%d, v%d, %s, %s offen sc1" % (r, vFk, SWS, sFl)
    flag_mask = lambda r: ["v_cmp_ne_u32 vcc, %s, v%d" % (sN, r), "s_and_b32 %s, %s, 28" % (sT1, sTB),
                           "s_lshr_b64 vcc, vcc, %s" % sT1, "s_mov_b32 %s, vcc_lo" % sMask]
    a("s_mov_b32 %s, %d" % (sCnt, cfg.get("nhint", 2)))
    a.label("L_hint")
    a(hint_load(vTmp + 1), optional=True)
    a("s_waitcnt vmcnt(0)")
    for t in flag_mask(vTmp + 1):
        a(t)
    a("s_and_b32 %s, %s, 0xf\ns_cbranch_scc0 L_hint_ok" % (sT0, sMask))
    a("s_sub_u32 %s, %s, 1\ns_cmp_lg_u32 %s, 0\ns_cbranch_scc1 L_hint" % (sCnt, sCnt, sCnt))
    a.label("L_hint_ok")
    stamp("hint")
    a("s_lshl_b32 %s, %s, 2\ns_add_u32 %s, %s, %d" % (sT0, sHH, sT0, sT0, L_SEL + 64))
    a("s_mov_b64 exec, 1")
    a("buffer_store_dword v%d, v%d, %s, %s offen sc1" % (vNn, vZ, SWS, sFo), optional=True)
    a("v_mov_b32 v%d, %s\nv_mov_b32 v%d, %s" % (vTmp, sT0, vTmp + 1, sMask))
    a("ds_write_b32 v%d, v%d" % (vTmp, vTmp + 1))
    a("s_mov_b64 exec, -1")
    a("s_waitcnt lgkmcnt(0)")
    a("s_and_b32 %s, %s, 0xf\ns_cbranch_scc1 L_noearly" % (sT0, sMask))
    early_loads()
    a.label("L_noearly")
    a("s_cmp_eq_u32 %s, 0\ns_cbranch_scc1 L_cand2" % sE)
    a.label("L_cand2_ret")
    if FAST:
        a("s_setprio %d" % PRIO0[0])
    a("s_barrier")
    stamp("B10")
    a("ds_read_b128 %s, v%d\nds_read_b128 %s, v%d offset:8192" % (vr(QA, 4), vIn, vr(QB, 4), vIn))

    a.lg = []
    assert a.vm == ["t%d" % t for t in EARLY for _ in range(3)], a.vm
    a.label("L_att")
    for _ in range(cfg.get("x_sleep", 0)):
        a("s_sleep 16")

    def qk(S, b, Q):
        a("v_mfma_f32_32x32x16_bf16 %s, %s, %s, 0" % (vr(S, 16), vr(KVB(b), 4), vr(Q, 4)))

    def pv(O, b, half, S):
        a("v_smfmac_f32_32x32x32_bf16 %s, %s, %s, v%d" % (vr(O, 16), vr(KVB(b) + 4 + 4 * half, 4), vr(S + 8 * half, 8), vIdx))

    def ex(S, i0, i1):
        for i in range(i0, i1):
            a("v_exp_f32 v%d, v%d" % (S + i, S + i))

    def wo_dma(i):
        if cfg.get("worot", 1):
            c2, kc = i & 1, i >> 1
            if c2 == 0:
                a("s_add_u32 %s, %s, %d\ns_and_b32 %s, %s, 7" % (sKw, sQ3, kc, sKw, sKw))
                a("s_lshl_b32 %s, %s, 13\ns_add_u32 %s, %s, %s\ns_lshl_b32 %s, %s, 16\ns_mov_b32 m0, %s" % (sRot, sKw, sRot, sRot, sM0, sKw, sKw, sRot))
            else:
                a("s_add_u32 m0, %s, %d" % (sRot, 65536 - 128))
            a("buffer_load_dwordx4 v%d, %s, %s offen offset:%d lds" % (vWoD, SWO, sKw, 128 * c2), tag="wo")
            return
        c2, kc = i >> 3, i & 7
        a("s_add_u32 m0, %s, %d\ns_mov_b32 %s, %d" % (sM0, i * 8192, sT0, kc * 65536 + c2 * 128))
        a("buffer_load_dwordx4 v%d, %s, %s offen lds" % (vWoD, SWO, sT0), tag="wo")

    POLLID = {"L_latewaitp": 4, "L_ehwaitp": 6, "L_owaitp": 5}
    def poll(lbl, load_lines, check_lines, sleep=2, wait="vmcnt(0) lgkmcnt(0)", limit=SPIN_MAX):
        a("s_mov_b32 %s, %d" % (sCnt, limit))
        a.label(lbl)
        if callable(load_lines):
            load_lines()
        else:
            for t in load_lines:
                a(t, optional=True)
        if STAMP and lbl in POLLID:
            a("s_add_u32 s101, s101, %d" % (1 << (4 * POLLID[lbl])))
        a("s_waitcnt " + wait)
        for t in check_lines:
            a(t)
        a("s_cbranch_vccz %s_ok" % lbl)
        a("s_sub_u32 %s, %s, 1\ns_cmp_eq_u32 %s, 0\ns_cbranch_scc1 %s_ok" % (sCnt, sCnt, sCnt, lbl))
        a("s_sleep %d\ns_branch %s" % (sleep, lbl))
        a.label(lbl + "_ok")
        a("s_nop 1")

    T_WO = cfg.get("t_wo", 8)
    T_RD = cfg.get("t_rd", 30)
    T_Y2 = cfg.get("t_y2", 31)
    YB = 116
    sOwA, sOwB = "s[64:65]", "s[66:67]"
    T_CLR = cfg.get("t_clr", 9)
    T_XT = cfg.get("t_xt", 27)
    T_EH = cfg.get("t_eh", [32, 0])
    T_FLAG = cfg.get("t_flag", [[1, 2], [4, 5]])
    NT = 32
    sched = {}
    todo = [t for t in range(1, NT) if t not in EARLY]
    for s in range(NT):
        lim = min(NT - 1, s + NB - 1, 3 if s < T_FLAG[0][1] else NT)
        la, lb_ = [], []
        if s > 0 and todo and todo[0] <= lim:
            la.append(todo.pop(0))
        if s > 0 and todo and todo[0] <= lim and s in cfg.get("ramp", [2]):
            lb_.append(todo.pop(0))
        sched[s] = (la, lb_)
    assert not todo
    def one_lane_store(r, so, mod, **kw):
        a("s_mov_b64 exec, 1")
        a("buffer_store_dword v%d, v%d, %s, %s offen %s" % (r, vZ, SWS, so, mod), **kw)
        a("s_mov_b64 exec, -1")
    EH1, EHW = cfg.get("eh1", 1), cfg.get("ehw", 0)
    def eh_addr():
        a("s_lshl_b32 %s, %s, 5\ns_add_u32 %s, %s, %s\ns_lshl_b32 %s, %s, 2\ns_add_u32 %s, %s, %s\ns_lshl_b32 %s, %s, 7\ns_add_u32 %s, %s, %d"
          % (sT0, sHG, sT0, sT0, sTB, sT0, sT0, sT0, sT0, sHH, sT0, sT0, sT0, sT0, EH_OFF))
    guard_reads = ["ds_read_b32 v%d, v%d offset:32" % (vTmp + 1, vTmp), "ds_read_b64 %s, v%d" % (vr(T, 2), vTmp)]
    late_loads = ["s_mov_b32 %s, %d" % (sT0, ST_OFF), "v_lshlrev_b32 v%d, 3, v%d" % (CK + 2, vTok),
                  "buffer_load_dwordx2 %s, v%d, %s, %s offen sc1" % (vr(CK + 2, 2), CK + 2, SWS, sT0),
                  "buffer_load_dword v%d, v%d, %s, %s offen sc1" % (CK, vSt, SWS, sCLc)]
    late_check = ["v_cmp_ne_u32 vcc, %s, v%d" % (sN, CK), "v_cmp_ne_u32 %s, %s, v%d" % (sP0, sN, CK + 3), "s_or_b64 vcc, vcc, %s" % sP0]

    ROLES = {}
    saved = {}

    def emit_tile(s, sfx="", hooks=None, mid=None):
        b = s % NB
        a("; ---- key tile %d%s" % (s, sfx))
        if not sfx:
            for (st, wv, lbl, en) in ROLE_LIST:
                if en == s:
                    a.label(lbl + "_ret")
            for (st, wv, lbl, en) in ROLE_LIST:
                if st == s:
                    saved[lbl] = (list(a.vm), list(a.lg))
                    if wv == 1:
                        a("s_and_b32 %s, %s, 5\ns_cmp_eq_u32 %s, 1\ns_cbranch_scc1 %s" % (sT0, sW, sT0, lbl))
                    else:
                        a("s_cmp_eq_u32 %s, %d\ns_cbranch_scc1 %s" % (sW, wv, lbl))
                    a.label(lbl + "_skip")
        if hooks and s in hooks:
            hooks[s]()
        if s in PRIO:
            p = PRIO[s]
            if isinstance(p, int):
                a("s_setprio %d" % p)
            else:
                for role in range(2):
                    if p[role] is not None:
                        a("s_cmp_lg_u32 %s, %d\ns_cbranch_scc1 L_prio%d_%d%s\ns_setprio %d" % (sTH, role, s, role, sfx, p[role]))
                        a.label("L_prio%d_%d%s" % (s, role, sfx))
        if s in (1, 8) or "only" in cfg:
            stamp("tile%d" % s)
        if s in [x[1] for x in T_FLAG]:
            a.wait(vm="fl")
            for t in flag_mask(vTmp):
                a(t)
        if s == T_WO + 18:
            a.wait(vm="wo")
            a("v_mov_b32 v%d, %d\nv_mov_b32 v%d, 1\ns_mov_b64 exec, 1" % (vTmp, L_SEL, vTmp + 1))
            a("ds_add_u32 v%d, v%d offset:32" % (vTmp, vTmp + 1), optional=True)
            a("s_mov_b64 exec, -1")
        if s == T_RD:
            a("s_waitcnt lgkmcnt(0)")
            a("v_cmp_gt_u32 vcc, 11, v%d\ns_cbranch_vccnz L_guardwait" % (vTmp + 1))
            a.label("L_guardwait_ret")
            a("v_cmp_eq_u32 %s, v%d, v%d\nv_cmp_eq_u32 %s, v%d, v%d" % (sOwA, vTok, T, sOwB, vTok, T + 1))
            a("s_or_b64 vcc, %s, %s\ns_cbranch_scc1 L_y1" % (sOwA, sOwB))
            a.label("L_y1_ret")
        if s == T_Y2:
            a("s_or_b64 vcc, %s, %s\ns_cbranch_scc1 L_y2" % (sOwA, sOwB))
            a.label("L_y2_ret")
        if s == cfg.get("t_chk", 30):
            a.wait(vm="xt")
            for t in late_check:
                a(t)
            a("s_cbranch_vccnz L_latewait")
            a.label("L_latewait_ret")
        wor = [lambda k=k: tr_read(WO + 4 * k, vWoA, (k >> 1) * 8192 + (k & 1) * 4096, "wo0", second=1024) for k in range(16)]
        nper = -(-16 // (cfg.get("t_rde", NT) - T_RD))
        wor = wor[(s - T_RD) * nper:(s - T_RD + 1) * nper] if s >= T_RD and not cfg.get("x_noword") else []
        def wo_some(n):
            for f in wor[:n]:
                f()
            del wor[:n]
        ex(SA, 0, 2)
        if s > 0:
            pv(OB, (s - 1) % NB, 1, SB)
        for t in sched[s][0]:
            if not (cfg.get("x_nokv") and t > 5):
                kv_load(t, sfx=sfx)
        if s in [x[0] for x in T_FLAG]:
            a(hint_load(vTmp), tag="fl")
        WS_ = -(-nper // 6)
        wo_some(WS_)
        ex(SA, 2, 5)
        qk(SB, b, QB)
        wo_some(WS_)
        if T_WO <= s < T_WO + 16 and not cfg.get("nowo"):
            wo_dma(s - T_WO)
        if s == 0 and FAST:
            a("s_cmp_lg_u32 %s, 0\ns_cbranch_scc1 L_ldstart" % sTH)
            a.label("L_ldstart_ret")
        if mid and s in mid:
            mid[s]()
        if s == T_CLR:
            a("buffer_store_dwordx4 %s, v1, %s, %s offen sc1" % (vr(XT, 4), SWS, sOP), tag="clr")
            if EH1:
                a("s_cmp_lg_u32 %s, %d\ns_cbranch_scc1 L_noehc%s" % (sW, EHW, sfx))
            else:
                a("s_cmp_eq_u32 %s, 0\ns_cbranch_scc1 L_noehc%s" % (sTH, sfx))
            eh_addr()
            one_lane_store(XT, sT0, "sc1", optional=True)
            a.label("L_noehc%s" % sfx)
        if s == T_CLR + 3:
            a.wait(vm="clr")
            one_lane_store(vNn, sCLp, "sc1", tag="clf")
        if s == T_XT:
            a("buffer_load_dwordx4 %s, v%d, %s, 0 offen" % (vr(XT, 4), vOut, SX), tag="xt")
            for t in late_loads:
                a(t, tag="xt")
        if s == cfg.get("t_ow", -1):
            if cfg.get("owkind") == "load":
                a("buffer_load_dword v%d, v%d, %s, 0 offen" % (T + 9, vOut, SOUT), tag="ow")
            elif cfg.get("owkind") == "one":
                a("s_mov_b64 exec, 1")
                a("buffer_store_dword v%d, v%d, %s, 0 offen" % (vZ, vOut, SOUT), tag="ow")
                a("s_mov_b64 exec, -1")
            else:
                a("buffer_store_dwordx4 %s, v%d, %s, 0 offen" % (vr(QA, 4), vOut, SOUT), tag="ow")
        def end_hint(pos):
            if [s, pos] == list(T_EH):
                a("s_cmp_eq_u32 %s, 0\ns_cbranch_scc1 L_noeh" % sTH)
                eh_addr()
                one_lane_store(vNn, sT0, "sc1", optional=True)
                a.label("L_noeh")
        end_hint(0)
        ex(SA, 5, 10)
        pv(OA, b, 0, SA)
        wo_some(WS_)
        ex(SA, 10, 16)
        ex(SB, 0, 2)
        pv(OA, b, 1, SA)
        if s == 0:
            a("s_and_b32 %s, %s, 0xf\ns_cbranch_scc1 L_slowstart" % (sT0, sMask))
            a.label("L_slowstart_ret")
        def next_qk():
            a.wait(vm="t%d" % (s + 1))
            qk(SA, (s + 1) % NB, QA)
        if s == T_RD - 1:
            for t in guard_reads:
                a(t, tag="gd")
        wo_some(WS_)
        end_hint(1)
        if s == NT - 1:
            if T_EH[0] == 32:
                eh_addr()
                a("s_mov_b32 %s, %s" % (sKx, sT0))
            a("s_mov_b32 %s, %s\ns_mov_b32 %s, %s" % (sT2, f32(2.0 ** -30), sT3, f32(2.0 ** 60)))
        ex(SB, 2, 5)
        if 0 < s < NT - 1:
            next_qk()
        wo_some(WS_)
        for t in sched[s][1]:
            kv_load(t, sfx=sfx)
        ex(SB, 5, 10)
        pv(OB, b, 0, SB)
        end_hint(2)
        wo_some(16)
        if s == NT - 1:
            ex(SB, 10, 13)
            a("ds_write_b128 v%d, %s\nds_write_b128 v%d, %s offset:1024\nds_write_b32 v%d, v%d" % (vSw, vr(OA, 4), vSw, vr(OA + 4, 4), vLw, OA + 8))
            ex(SB, 13, 16)
        else:
            ex(SB, 10, 16)
        if s == 0:
            next_qk()

    R0, R1, R2, R3 = cfg.get("roles", [[0, 3, 6], [1, 2, 7, 10, 13], [2, 12, 21, 24], [0, 16, 17, 20]])
    ROLE_LIST = [(r[1], r[0], "L_st%d" % i, r[-1]) for i, r in enumerate((R0, R1, R2, R3))]
    if cfg.get("x_nor0"):
        ROLE_LIST[0] = (R0[1], 9, "L_st0", R0[-1])
    a("s_and_b32 %s, %s, 0xf\ns_cbranch_scc0 L_nohint2" % (sT0, sMask))
    a(hint_load(CK + 1), optional=True)
    a.label("L_nohint2")
    a("s_waitcnt lgkmcnt(0)")
    qk(SA, 0, QA)
    a("s_nop 7\ns_nop 3")
    a.label("L_att2")
    for s in range(NT):
        emit_tile(s)
    pv(OB, (NT - 1) % NB, 1, SB)
    stamp("loopend")

    def tail_hint(pos):
        if [32, pos] == list(T_EH):
            if EH1:
                a("s_cmp_lg_u32 %s, %d\ns_cbranch_scc1 L_noeh" % (sW, EHW))
            else:
                a("s_cmp_eq_u32 %s, 0\ns_cbranch_scc1 L_noeh" % sTH)
            one_lane_store(vNn, sKx, "sc1", optional=True)
            a.label("L_noeh")
    if not EH1:
        a("v_and_b32 v%d, 0x180, v%d" % (vFk, vFk))
    a("s_setprio 2")
    a("s_waitcnt lgkmcnt(0)")
    a("s_barrier")
    stamp("T1")
    a("ds_read_b32 v%d, v%d" % (SA + 8, vLr), tag="pl")
    a("ds_read_b128 %s, v%d\nds_read_b128 %s, v%d offset:1024" % (vr(SA, 4), vSr, vr(SA + 4, 4), vSr), tag="pp")
    GS, UP, XE, G, GT = 84, 88, 96, 104, 112
    eh_load = "buffer_load_dword v%d, v%d, %s, %s offen sc1" % (CK, vZ if EH1 else vFk, SWS, sEHc)
    if cfg.get("ehfirst"):
        tail_hint(0)
    a(eh_load, tag="eh")
    if not cfg.get("ehfirst"):
        tail_hint(0)
    a("s_nop 2")
    a.wait(lg="pl")
    a("v_add_f32 v%d, v%d, v%d" % (OB + 8, OB + 8, SA + 8))
    a("v_cmp_nle_f32 vcc, %s, v%d\nv_cmp_nge_f32 %s, %s, v%d" % (sT2, OB + 8, sP0, sT3, OB + 8))
    a("v_rcp_f32 v%d, v%d" % (OB + 8, OB + 8))
    a("s_or_b64 vcc, vcc, %s" % sP0)
    a.wait(lg="pp")
    for i in range(0, 8, 2):
        a("v_pk_add_f32 %s, %s, %s" % (vr(OB + i, 2), vr(OB + i, 2), vr(SA + i, 2)))
    if cfg.get("force_fallback"):
        a("s_branch L_fallback")
    else:
        a("s_cbranch_vccnz L_fallback")
    a.label("L_fallback_ret")
    for i in range(0, 8, 2):
        a("v_pk_mul_f32 %s, %s, %s op_sel_hi:[0,1]" % (vr(OB + i, 2), vr(OB + 8, 2), vr(OB + i, 2)))
    OF = OA
    pack(OF, OB)
    for i in range(4):
        a("v_min_u32 v%d, -2, v%d" % (OF + i, OF + i))
    a("buffer_store_dwordx4 %s, v1, %s, %s offen sc1" % (vr(OF, 4), SWS, sOP), tag="ost")
    tail_hint(1)
    stamp("ostore")
    a("s_setprio 0")
    a("s_or_b64 vcc, %s, %s\ns_cbranch_scc1 L_y3" % (sOwA, sOwB))
    a.label("L_y3_ret")
    a("v_mov_b32 v%d, %d\nv_mov_b32 v%d, %d\nv_mov_b32 v%d, %d" % (GT, L_ZERO, GT + 1, L_UPD, GT + 2, L_UPD + 512))
    a("v_cndmask_b32 v%d, v%d, v%d, %s\nv_cndmask_b32 v%d, v%d, v%d, %s" % (GT, GT, GT + 2, sOwB, GT, GT, GT + 1, sOwA))
    a("v_add_u32 v%d, v%d, v%d" % (GT, GT, vUp))
    a("ds_read_b128 %s, v%d\nds_read_b128 %s, v%d offset:16" % (vr(UP, 4), GT, vr(UP + 4, 4), GT), tag="up")

    def unpack(dst, src, n):
        return ["v_lshlrev_b32 v%d, 16, v%d\nv_and_b32 v%d, 0xffff0000, v%d" % (dst + 2 * i, src + i, dst + 2 * i + 1, src + i) for i in range(n)]

    def repack_l(buf, tmp, n):
        return ["v_cvt_pk_bf16_f32 v%d, v%d, v%d" % (tmp + i, buf + 2 * i, buf + 2 * i + 1) for i in range(n)] + unpack(buf, tmp, n)

    def repack(buf, tmp, n):
        for t in repack_l(buf, tmp, n):
            a(t)

    g1 = ["v_and_b32 v%d, 0xffff0000, v%d\nv_lshlrev_b32 v%d, 16, v%d\nv_rcp_f32 v%d, v%d" % (GS + 1, CK + 2, GS, CK + 2, GS + 1, GS + 1)]
    g1 += unpack(XE, XT, 4)
    g1 += ["v_pk_add_f32 %s, %s, %s op_sel_hi:[1,0] neg_lo:[0,1] neg_hi:[0,1]" % (vr(G + i, 2), vr(XE + i, 2), vr(GS, 2)) for i in range(0, 8, 2)]
    if cfg.get("gate_round", 2) >= 2:
        g1 += repack_l(G, GT, 4)
    g1 += ["v_pk_mul_f32 %s, %s, %s op_sel:[0,1]" % (vr(G + i, 2), vr(G + i, 2), vr(GS, 2)) for i in range(0, 8, 2)]
    if cfg.get("gate_round", 2) >= 1:
        g1 += repack_l(G, GT, 4)
    for t in g1:
        a(t)
    a("s_mov_b32 s58, %s\ns_mov_b32 s59, s58" % f32(-LOG2E))
    g2 = ["v_pk_add_f32 %s, %s, %s" % (vr(G + i, 2), vr(G + i, 2), vr(UP + i, 2)) for i in range(0, 8, 2)]
    g2 += ["v_pk_mul_f32 %s, s[58:59], %s" % (vr(UP + i, 2), vr(G + i, 2)) for i in range(0, 8, 2)]
    g2 += ["v_exp_f32 v%d, v%d" % (UP + i, UP + i) for i in range(8)]
    g2 += ["v_pk_add_f32 %s, %s, 1.0 op_sel_hi:[1,0]" % (vr(UP + i, 2), vr(UP + i, 2)) for i in range(0, 8, 2)]
    g2 += ["v_rcp_f32 v%d, v%d" % (UP + i, UP + i) for i in range(8)]
    g2 += ["v_pk_mul_f32 %s, %s, %s" % (vr(G + i, 2), vr(G + i, 2), vr(UP + i, 2)) for i in range(0, 8, 2)]
    if cfg.get("gate_round", 2) >= 2:
        g2 += repack_l(G, GT, 4)
    OL, OCk = SA, SB
    loads = ["buffer_load_dwordx4 %s, v1, %s, %s offen offset:%d sc1" % (vr(OL + 4 * i, 4), SWS, sOC, 1024 * i) for i in range(4)]
    def chk1(i):
        return ["v_max3_u32 v%d, v%d, v%d, v%d" % (OCk, OL + 4 * i, OL + 4 * i + 1, OCk if i else OL),
                "v_max3_u32 v%d, v%d, v%d, v%d" % (OCk, OL + 4 * i + 2, OL + 4 * i + 3, OCk)]
    chk = chk1(0) + chk1(1) + chk1(2) + chk1(3) + ["v_cmp_eq_u32 vcc, -1, v%d" % OCk]
    o_write = lambda i: "ds_write_b128 v%d, %s offset:%d" % (vOw, vr(OL + 4 * i, 4), 1024 * i)
    NG = cfg.get("g2pre", 0)
    a.wait(lg="up")
    for t in g2[:NG]:
        a(t)
    if cfg.get("ack"):
        a.wait(vm="ost")
    if not cfg.get("noeh"):
        a.wait(vm="eh")
        a("v_cmp_ne_u32 vcc, %s, v%d\ns_cbranch_vccnz L_ehwait" % (sN, CK))
        a.label("L_ehwait_ret")
    stamp("oack")
    for i, t in enumerate(loads):
        a(t, tag="ol%d" % i)
    for t in g2[NG:]:
        a(t)
    for i in range(4):
        a.wait(vm="ol%d" % i)
        a(o_write(i))
        for t in chk1(i):
            a(t)
    a(chk[-1])
    a("s_cbranch_vccnz L_owait")
    a.label("L_owait_ret")
    a("s_waitcnt lgkmcnt(0)")
    a("s_barrier")
    stamp("T3")
    ACC, RB, NRB = 116, 32, cfg.get("nrb", 8)
    seq = [(s, tt) for s in range(16) for tt in range(2)]
    def o_read(i):
        s, tt = seq[i]
        a("ds_read_b128 %s, v%d offset:%d" % (vr(RB + 4 * (i % NRB), 4), vOr, s * 2048 + tt * 256), tag="or%d" % i)
    STG = cfg.get("stagger", None)
    if STG is not None:
        a("s_cmp_eq_u32 %s, 0\ns_cbranch_scc1 L_stg0\ns_barrier" % sTH)
        a.label("L_stg0")
    for i in range(NRB - 2):
        o_read(i)
    for i, (s, tt) in enumerate(seq):
        if i + NRB - 2 < len(seq):
            o_read(i + NRB - 2)
        if i == STG:
            a("s_cbranch_scc0 L_stg1\ns_barrier")
            a.label("L_stg1")
        GW = cfg.get("gw", 2)
        if i % GW == 0 or i < 2:
            a.wait(lg="or%d" % (i if i < 2 else min(len(seq) - 1, i + GW - 1)))
        elif i < GW:
            a.wait(lg="or%d" % (GW - 1))
        mfma16(ACC + 4 * tt, WO + 4 * s, RB + 4 * (i % NRB), s == 0)
    a("s_or_b32 %s, s2, %s\ns_mov_b32 %s, %d" % (sT0, sW, sT1, NONCE_OFF))
    for r in range(4):
        a("v_permlane16_swap_b32 v%d, v%d" % (ACC + r, ACC + 4 + r))
    for i in range(0, 8, 2):
        a("v_pk_fma_f32 %s, %s, %s, %s" % (vr(ACC + i, 2), vr(ACC + i, 2), vr(G + i, 2), vr(XE + i, 2)))
    if cfg.get("x_err"):
        a("s_cmp_eq_u32 %s, 0\ns_cselect_b64 exec, 1, 0\nv_add_f32 v%d, %s, v%d\ns_mov_b64 exec, -1" % (sT0, ACC + 1, f32(cfg["x_err"]), ACC + 1))
    pack(GT, ACC)
    a("buffer_store_dwordx4 %s, v%d, %s, 0 offen %s" % (vr(GT, 4), vOut, SOUT, cfg.get("outmod", "")))
    a("s_cmp_lg_u32 %s, 0\ns_cbranch_scc1 L_nononce" % sT0)
    a("s_mov_b64 exec, 1")
    a("buffer_store_dword v%d, v%d, %s, %s offen sc1" % (vNn, vZ, SWS, sT1), optional=True)
    a.label("L_nononce")
    for _ in range(cfg.get("x_sleep9", 0)):
        a("s_sleep 16")
    if AMP:
        a("s_waitcnt vmcnt(0)")
        stamp("end")
        a("s_memrealtime s[94:95]\ns_waitcnt lgkmcnt(0)")
        if len(AMP) > 3 and AMP[3] == "avg":
            a("s_sub_u32 s98, s98, s96\nv_mov_b32 v20, s98\ns_cmp_eq_u32 %s, 0\ns_cselect_b64 exec, 1, 0" % sW)
            a("global_atomic_add v%d, v20, s[90:91] sc1\ns_waitcnt vmcnt(0)\ns_mov_b64 exec, 1" % vZ)
            a("s_sleep 127\ns_sleep 127")
            a("global_load_dword v20, v%d, s[90:91] sc1\ns_waitcnt vmcnt(0)\nv_readfirstlane_b32 s98, v20" % vZ)
            a("s_mul_i32 s98, s98, %d\ns_lshr_b32 s98, s98, 8\ns_add_u32 s98, s98, 1000\ns_min_u32 s98, s98, 100000" % AMP[2])
            a("s_or_b32 s99, s2, %s\ns_cselect_b32 s98, 0, s98" % sW)
        else:
            a("s_sub_u32 s98, s98, s96\ns_mul_i32 s98, s98, %d\ns_min_u32 s98, s98, 100000" % AMP[2])
            if len(AMP) > 3:
                a("s_cmp_eq_u32 s2, %d\ns_cselect_b32 s98, s98, 0" % AMP[3])
        a.label("L_amp")
        a("s_sleep 1\ns_memrealtime s[92:93]\ns_waitcnt lgkmcnt(0)\ns_sub_u32 s92, s92, s94\ns_cmp_lt_u32 s92, s98\ns_cbranch_scc1 L_amp")
    if STAMP:
        stamp("outst")
        a("s_waitcnt vmcnt(0)")
        stamp("end")
        a("s_memrealtime s[58:59]\ns_waitcnt lgkmcnt(0)")
        a("s_lshl_b32 %s, s2, 3\ns_add_u32 %s, %s, %s\ns_lshl_b32 %s, %s, 7\ns_add_u32 %s, %s, %d" % (sT0, sT0, sT0, sW, sT0, sT0, sT0, sT0, DBG_OFF))
        a("s_mov_b64 exec, 1")
        assert len(stamps) <= 16
        vals = ["s84", "s58"] + ["s%d" % (85 + i) for i in range(len(stamps))] + ["s101"]
        for i, sv in enumerate(vals):
            a("v_mov_b32 v20, %s" % sv)
            a("buffer_store_dword v20, v%d, %s, %s offen offset:%d" % (vZ, SWS, sT0, 4 * i))
        a("s_waitcnt vmcnt(0)")
    a("s_endpgm")

    def two_stage(lbl, first_load, hload, fload, check, pid=None):
        a("s_mov_b32 %s, 24" % sCnt)
        if first_load:
            a(hload, optional=True)
        a.label(lbl + "h")
        if STAMP and pid is not None:
            a("s_add_u32 s101, s101, %d" % (1 << pid))
        a("s_waitcnt vmcnt(0)")
        for t in check:
            a(t)
        a("s_cbranch_vccz %sdone" % lbl)
        a(hload, optional=True)
        a("s_sub_u32 %s, %s, 1\ns_cmp_lg_u32 %s, 0\ns_cbranch_scc1 %sh" % (sCnt, sCnt, sCnt, lbl))
        poll(lbl + "f", fload, check, sleep=4)
        a.label(lbl + "done")
    grp_check = lambda u: flag_mask(CK + 1) + ["s_and_b32 vcc_lo, vcc_lo, 0x%x" % (0xf << (4 * u)), "s_mov_b32 vcc_hi, 0", "s_mov_b64 vcc, vcc"]
    if FAST:
        a.label("L_ldstart")
        a("s_waitcnt lgkmcnt(0)")
        a("v_readfirstlane_b32 %s, v%d\ns_and_b32 %s, %s, 0xf\ns_cbranch_scc1 L_ldstart2" % (sMask, vTmp + 1, sT0, sMask))
        early_loads(True)
        a("s_branch L_ldstart_ret")
        a.label("L_ldstart2")
        a(hint_load(CK + 1), optional=True)
        a("s_branch L_ldstart_ret")
    a.label("L_slowstart")
    two_stage("L_slow", False, hint_load(CK + 1), [flag_load(CK + 1)], grp_check(0), 0)
    early_loads(True)
    a("s_branch L_slowstart_ret")
    a.label("L_latewait")
    poll("L_latewaitp", late_loads, late_check, sleep=4)
    a("s_branch L_latewait_ret")
    a.label("L_ehwait")
    poll("L_ehwaitp", [eh_load], ["v_cmp_ne_u32 vcc, %s, v%d" % (sN, CK)], sleep=cfg.get("ehsleep", 3), limit=256)
    a("s_branch L_ehwait_ret" if not cfg.get("noeh") else "s_endpgm")
    a.label("L_guardwait")
    poll("L_guardwaitp", guard_reads, ["v_cmp_gt_u32 vcc, 11, v%d" % (vTmp + 1)], wait="lgkmcnt(0)")
    a("s_branch L_guardwait_ret")
    a.label("L_owait")
    a("s_waitcnt lgkmcnt(0)")
    poll("L_owaitp", loads, chk, sleep=cfg.get("osleep", 2))
    for i in range(4):
        a(o_write(i), optional=True)
    a("s_branch L_owait_ret")

    def wave_max(dst_s, src, tmp):
        first = True
        for pat in ("quad_perm:[1,0,3,2] row_mask:0xf", "quad_perm:[2,3,0,1] row_mask:0xf", "row_half_mirror row_mask:0xf",
                    "row_mirror row_mask:0xf", "row_bcast:15 row_mask:0xa", "row_bcast:31 row_mask:0xc"):
            s_ = src if first else tmp
            a("v_max_u32_dpp v%d, v%d, v%d %s bank_mask:0xf" % (tmp, s_, s_, pat))
            first = False
        a("v_readlane_b32 %s, v%d, 63" % (dst_s, tmp))

    def top2(key, mid=None):
        wave_max(sA, key, T + 8)
        a("v_cmp_eq_u32 %s, %s, v%d" % (sP0, sA, key))
        a("v_cndmask_b32 v%d, v%d, 0, %s" % (T + 9, key, sP0))
        if mid:
            mid()
        wave_max(sB, T + 9, T + 8)
        a("v_cmp_eq_u32 %s, %s, v%d" % (sP1, sB, key))

    a.label("L_cand")
    a("v_add_u32 v%d, %d, v%d" % (T + 4, L_RR, vL4))
    a("ds_read_b32 v%d, v%d\nds_read_b32 v%d, v%d offset:256" % (T, T + 4, T + 2, T + 4), optional=True)
    a("s_lshl_b32 %s, %s, 6\ns_sub_u32 %s, 2047, %s\nv_sub_u32 v%d, %s, v0" % (sT0, sTB, sT0, sT0, T + 5, sT0))
    a("v_mov_b32 v%d, %s\nv_mov_b32 v%d, %s" % (T + 1, sN, T + 3, sN))
    a("s_waitcnt lgkmcnt(0)")
    a("v_ashrrev_i32 v%d, 31, v%d\nv_or_b32 v%d, 0x80000000, v%d\nv_xor_b32 v%d, v%d, v%d" % (T + 6, T, T + 6, T + 6, T, T, T + 6))
    a("v_and_b32 v%d, 0xffff0000, v%d\nv_or_b32 v%d, v%d, v%d" % (T, T, T, T, T + 5))
    CB = cfg.get("candbar", 0)
    if CB == 0:
        a("s_barrier")
    top2(T, (lambda: a("s_barrier")) if CB == 1 else None)
    a("v_cndmask_b32 v%d, 0, 16, %s\nv_lshlrev_b32 v%d, 3, v0" % (T + 4, sP1, T + 5))
    a("s_branch L_cand_ret")
    a.label("L_cand2")
    a("s_lshl_b32 %s, %s, 5\ns_add_u32 %s, %s, %d\ns_lshl_b32 %s, %s, 9\ns_add_u32 %s, %s, %d" % (sT0, sTB, sT0, sT0, CAND_OFF, sT1, sTB, sT1, sT1, ST_OFF))
    a("buffer_store_dwordx2 %s, v%d, %s, %s offen sc1" % (vr(T + 2, 2), T + 5, SWS, sT1), optional=True)
    a("s_or_b64 exec, %s, %s" % (sP0, sP1))
    a("buffer_store_dwordx4 %s, v%d, %s, %s offen sc1" % (vr(T, 4), T + 4, SWS, sT0), optional=True)
    a("s_mov_b64 exec, -1\ns_branch L_cand2_ret")

    def role(i, R, entry, steps, mid=None):
        lbl = "L_st%d" % i
        a.label(lbl)
        a.vm, a.lg = saved[lbl]
        entry(lbl + "_skip")
        hooks = dict(zip(R[1:-1], steps[:-1]))
        for s in range(R[1], R[-1]):
            emit_tile(s, "_r%d" % i, hooks, mid)
        steps[-1]()
        a("s_branch %s_ret" % lbl)

    def cond_poll(lbl, loads, checks):
        a.wait(vm="r")
        for t in checks:
            a(t)
        a("s_cbranch_vccz %s_done" % lbl)
        sv = list(a.vm)
        poll(lbl, loads, checks, sleep=4)
        a.vm = sv
        a.label(lbl + "_done")

    def lds_poll(lbl, off, cmp_):
        a("v_mov_b32 v%d, %d" % (T + 7, L_SEL))
        poll(lbl, ["ds_read_b32 v%d, v%d offset:%d" % (T + 6, T + 7, off)], [cmp_ % (T + 6)], wait="lgkmcnt(0)")

    def sel_poll(lbl):
        lds_poll(lbl, 24, "v_cmp_eq_u32 vcc, 0, v%d")
        a("ds_read_b128 %s, v%d\nds_read_b64 %s, v%d offset:16" % (vr(T, 4), T + 7, vr(T + 4, 2), T + 7))
        a("s_waitcnt lgkmcnt(0)")

    def count_up():
        a("v_mov_b32 v%d, 1\nv_mov_b32 v%d, %d\ns_mov_b64 exec, 1" % (T + 6, T + 7, L_SEL))
        a("ds_add_u32 v%d, v%d offset:32" % (T + 7, T + 6), optional=True)
        a("s_mov_b64 exec, -1")

    def raise_flag(soff, near=None):
        a.wait(vm="rs")
        a("s_mov_b64 exec, 1")
        if near:
            a("buffer_store_dword v%d, v%d, %s, %s offen" % (vNn, vZ, SWS, near), optional=True)
        a("buffer_store_dword v%d, v%d, %s, %s offen sc1" % (vNn, vZ, SWS, soff), optional=True)
        a("s_mov_b64 exec, -1")

    def w_dma_plan(items, stride, t0_, t1_):
        per = -(-len(items) // (t1_ - t0_))
        def mk(chunk):
            def f():
                for (srd, i) in chunk:
                    a("s_add_u32 m0, %s, %d\ns_add_u32 %s, %s, %d" % (sFd, 1024 * i, sT0, sFg, 8 * i * stride))
                    a("buffer_load_dwordx4 v%d, %s, %s offen %s lds" % ((vFg, vFd)[i & 1], srd, sT0, cfg.get("ffnmod", "nt")), tag="rw")
            return f
        return dict((t0_ + k, mk(items[k * per:(k + 1) * per])) for k in range(t1_ - t0_) if items[k * per:(k + 1) * per] and not cfg.get("x_nodma"))

    XA, WB, AC = T + 10, T + 18, T + 50

    def w_reads(off):
        for t in range(4):
            for ks in range(2):
                tr_read(WB + (t * 2 + ks) * 4, AD + t, off + ks * 4096, None)

    def w_mfmas():
        for ks in range(2):
            for t in range(4):
                mfma16(AC + 4 * t, XA + 4 * ks, WB + (t * 2 + ks) * 4, ks == 0)

    def select_rows(n):
        for g in range(1, 4):
            a("s_lshl_b64 exec, exec, 16")
            for r in range(n):
                a("v_mov_b32 v%d, v%d" % (AC + r, AC + 4 * g + r))
        a("s_mov_b64 exec, -1")

    NF = 0 if cfg.get("noffn") else 28

    cand_load = "buffer_load_dwordx4 %s, v1, %s, %s offen sc1" % (vr(T, 4), SWS, sA)
    def st0a():
        a("s_mov_b32 %s, %d" % (sA, CAND_OFF))
        a(cand_load, tag="r")
    def st0b():
        cond_poll("L_candpoll", [cand_load],
                  ["v_cmp_ne_u32 vcc, %s, v%d" % (sN, T + 1), "v_cmp_ne_u32 %s, %s, v%d" % (sP0, sN, T + 3), "s_or_b64 vcc, vcc, %s" % sP0])
        top2(T)
        a("s_ff1_i32_b64 %s, %s\ns_ff1_i32_b64 %s, %s" % (sC, sP0, sD_, sP1))
        a("s_and_b32 %s, %s, 63\ns_and_b32 %s, %s, 63" % (sC, sC, sD_, sD_))
        a("v_readlane_b32 %s, v%d, %s\nv_readlane_b32 %s, v%d, %s" % (sC, T + 2, sC, sD_, T + 2, sD_))
        a("s_and_b32 %s, %s, 2047\ns_sub_u32 %s, 2047, %s\ns_and_b32 %s, %s, 2047\ns_sub_u32 %s, 2047, %s" % (sE, sA, sE, sE, sF, sB, sF, sF))
        a("v_add_u32 v%d, %d, v%d\nv_mov_b32 v%d, 1" % (T + 1, L_SEL, vL4, T))
        for i, sv in enumerate((sE, sF, sC, sD_, sA, sB)):
            a("v_writelane_b32 v%d, %s, %d" % (T, sv, i))
        a("s_mov_b64 exec, 0x3f")
        a("ds_write_b32 v%d, v%d" % (T + 1, T))
        a("s_waitcnt lgkmcnt(0)\ns_mov_b64 exec, 0x40")
        a("ds_write_b32 v%d, v%d\nds_add_u32 v%d, v%d offset:8" % (T + 1, T, T + 1, T), optional=True)
        a("s_mov_b64 exec, -1")
    role(0, R0, lambda skip: None, [st0a, st0b])

    def st1e(skip):
        a("s_cmp_lt_u32 %s, %d\ns_cbranch_scc1 L_st1_go" % (sFB, NF))
        count_up()
        a("s_branch %s" % skip)
        a.label("L_st1_go")
    def st1s():
        a("s_mul_i32 %s, %s, %d\ns_lshl_b32 %s, %s, 7\ns_add_u32 %s, %s, %s" % (sFg, sFJ, 64 * 3584, sA, sFB, sFg, sFg, sA))
        a("s_cmp_eq_u32 %s, 3\ns_cselect_b64 s[28:29], s[32:33], s[28:29]" % sW)
    def st1a():
        for i in range(8):
            a("v_mov_b32 v%d, 0x3f803f80" % (XA + i))
        sel_poll("L_selpoll1")
        a("v_cndmask_b32 v%d, v%d, v%d, %s" % (T, T, T + 1, sAux))
        a("v_and_b32 v%d, 48, v0\nv_lshl_add_u32 v%d, v%d, 10, v%d" % (T + 1, T + 1, T, T + 1))
        a("s_lshl_b32 %s, %s, 7\ns_mov_b32 exec_lo, 0x33333333\ns_mov_b32 exec_hi, 0x33333333" % (sA, sFJ))
        a("buffer_load_dwordx4 %s, v%d, %s, %s offen" % (vr(XA, 4), T + 1, SX, sA), tag="r")
        a("buffer_load_dwordx4 %s, v%d, %s, %s offen offset:64" % (vr(XA + 4, 4), T + 1, SX, sA), tag="r")
        a("s_mov_b64 exec, -1")
        for t in range(2):
            a("v_and_b32 v%d, 0xffff0000, v%d\nv_lshlrev_b32 v%d, 16, v%d\nv_rcp_f32 v%d, v%d" % (T + 4 + t, T + 2 + t, T + 2 + t, T + 2 + t, T + 4 + t, T + 4 + t))
    def st1b():
        a.wait(vm=("rw", "r"))
        w_reads(0)
        a("s_lshl_b32 %s, %s, 3\ns_add_u32 %s, %s, %s\ns_lshl_b32 %s, %s, 1\ns_lshr_b32 %s, %s, 1\ns_add_u32 %s, %s, %s" % (sB, sFB, sB, sB, sFJ, sB, sB, sC, sW, sB, sB, sC))
        a("s_and_b32 %s, %s, 15\ns_lshl_b32 %s, %s, 5\ns_add_u32 %s, %s, %s\ns_lshl_b32 %s, %s, 2\ns_add_u32 %s, %s, %d" % (sA, sB, sC, sFB, sA, sA, sC, sA, sA, sA, sA, GUH_OFF))
        a("s_lshl_b32 %s, %s, 7\ns_add_u32 %s, %s, %d" % (sC, sB, sC, sC, GUF_OFF))
        a("s_lshl_b32 %s, %s, 9\ns_add_u32 %s, %s, %d" % (sB, sB, sB, sB, GU_OFF))
        a("v_lshlrev_b32 v%d, 3, v0" % T)
        a("s_waitcnt lgkmcnt(0)")
        w_mfmas()
        count_up()
        select_rows(3)
        for t in range(2):
            a("v_fma_f32 v%d, -v%d, v%d, v%d" % (AC + t, T + 2 + t, AC + 2, AC + t))
        for t in range(2):
            a("v_mul_f32 v%d, v%d, v%d" % (AC + t, T + 4 + t, AC + t))
        a("buffer_store_dwordx2 %s, v%d, %s, %s offen sc1" % (vr(AC, 2), T, SWS, sB), tag="rs")
    D1 = cfg.get("dma1", [R1[1], R1[3] - 3])
    role(1, R1, st1e, [st1s, st1a, st1b, lambda: raise_flag(sC, sA)],
         w_dma_plan([(SG, i) for i in range(8)], 3584, *D1))

    word_load = "buffer_load_dword v%d, v%d, %s, %s offen sc1" % (T + 1, T, SWS, sA)
    word_check = ["v_cmp_ne_u32 vcc, %s, v%d" % (sN, T + 1)]
    PB, P = WB, T + 2
    def st2s():
        a("s_lshl_b32 %s, %s, 16\ns_lshl_b32 %s, %s, 7\ns_add_u32 %s, %s, %s" % (sFg, sFB, sA, sFJ, sFg, sFg, sA))
    def st2a():
        a("v_and_b32 v%d, 60, v%d" % (T, vL4))
        a("s_lshl_b32 %s, %s, 7\ns_add_u32 %s, %s, %d" % (sA, sFB, sA, sA, GUH_OFF))
        a(word_load, tag="r")
    def st2b():
        a.wait(vm="r")
        a(word_check[0] + "\ns_cbranch_vccz L_gu_ok")
        sv = list(a.vm)
        a("s_lshl_b32 %s, %s, 11\ns_add_u32 %s, %s, %d\nv_lshlrev_b32 v%d, 5, v%d" % (sB, sFB, sB, sB, GUF_OFF, T + 2, T))
        two_stage("L_gu", True, word_load, ["buffer_load_dword v%d, v%d, %s, %s offen sc1" % (T + 1, T + 2, SWS, sB)], word_check)
        a.vm = sv
        a.label("L_gu_ok")
        a("s_lshl_b32 %s, %s, 13\ns_add_u32 %s, %s, %d\ns_add_u32 %s, %s, 4096" % (sA, sFB, sA, sA, GU_OFF, sB, sA))
        for j in range(8):
            a("buffer_load_dwordx4 %s, v1, %s, %s offen offset:%d sc1" % (vr(PB + 4 * j, 4), SWS, sA if j < 4 else sB, 1024 * (j & 3)), tag="r")
        a("v_and_b32 v%d, 124, v%d\nv_lshrrev_b32 v%d, 5, v0\nv_lshl_add_u32 v%d, v%d, 1, v%d\nv_add_u32 v%d, %d, v%d" % (T + 8, vL4, T + 9, T + 8, T + 9, T + 8, T + 8, L_H, T + 8))
    def st2c():
        a.wait(vm="r")
        for j in range(1, 8):
            for i in range(4):
                a("v_add_f32 v%d, v%d, v%d" % (P + i, PB + i if j == 1 else P + i, PB + 4 * j + i))
        a("v_mov_b32 v%d, 1\nv_mov_b32 v%d, %d" % (T + 6, T + 7, L_SEL))
        a("v_permlane32_swap_b32 v%d, v%d\nv_permlane32_swap_b32 v%d, v%d" % (P, P + 2, P + 1, P + 3))
        repack(P, T, 2)
        for op in ("v_mul_f32 v%d, " + f32(-LOG2E) + ", v%d", "v_exp_f32 v%d, v%d", "v_add_f32 v%d, 1.0, v%d", "v_rcp_f32 v%d, v%d"):
            for i in range(2):
                a(op % (T + i, P + i if op.startswith("v_mul") else T + i))
        a("v_mul_f32 v%d, v%d, v%d\nv_mul_f32 v%d, v%d, v%d" % (P, P, T, P + 1, P + 1, T + 1))
        repack(P, T, 1)
        a("v_mul_f32 v%d, v%d, v%d\nv_mul_f32 v%d, v%d, v%d" % (P, P, P + 2, P + 1, P + 1, P + 3))
        a("v_cvt_pk_bf16_f32 v%d, v%d, v%d" % (T, P, P + 1))
        a("ds_write_b16 v%d, v%d\nds_write_b16_d16_hi v%d, v%d offset:128" % (T + 8, T, T + 8, T))
        a("s_waitcnt lgkmcnt(0)")
        a("ds_write_b32 v%d, v%d offset:44" % (T + 7, T + 6), optional=True)
    ffn_entry = lambda skip: a("s_cmp_ge_u32 %s, %d\ns_cbranch_scc1 %s" % (sFB, NF, skip))
    role(3, R3, ffn_entry, [st2a, st2b, st2c])
    def st2d():
        a.wait(vm="rw")
        w_reads(0)
        a("v_and_b32 v%d, 1, v0\nv_and_b32 v%d, 48, v0\nv_lshl_add_u32 v%d, v%d, 7, v%d\nv_add_u32 v%d, %d, v%d"
          % (T + 9, T + 8, T + 9, T + 9, T + 8, T + 9, L_H, T + 9))
        lds_poll("L_hpoll", 44, "v_cmp_eq_u32 vcc, 0, v%d")
        a("ds_read_b128 %s, v%d\nds_read_b128 %s, v%d offset:64" % (vr(XA, 4), T + 9, vr(XA + 4, 4), T + 9))
        a("s_lshl_b32 %s, %s, 12\ns_lshl_b32 %s, %s, 9\ns_add_u32 %s, %s, %s\ns_add_u32 %s, %s, %d" % (sB, sFB, sA, sFJ, sB, sB, sA, sB, sB, Y_OFF))
        a("s_lshl_b32 %s, %s, 5\ns_add_u32 %s, %s, %s\ns_mul_i32 %s, %s, %d\ns_add_u32 %s, %s, %d" % (sA, sFJ, sA, sA, sFB, sA, sA, FS, sA, sA, YF_OFF))
        a("v_lshlrev_b32 v%d, 3, v0" % T)
        a("s_waitcnt lgkmcnt(0)")
        w_mfmas()
        select_rows(2)
        a("buffer_store_dwordx2 %s, v%d, %s, %s offen sc1" % (vr(AC, 2), T, SWS, sB), tag="rs")
    role(2, R2, ffn_entry, [st2s, st2d, lambda: raise_flag(sA)],
         w_dma_plan([(SD, i) for i in range(8)], 1024, *cfg.get("dma2", [R2[1], R2[2] - 3])))

    yf_load = "buffer_load_dword v%d, v%d, %s, %s offen sc1" % (CK + 1, T + 2, SWS, sA)
    yf_check = ["v_cmp_ne_u32 vcc, %s, v%d" % (sN, CK + 1)]
    a.label("L_y1")
    a("v_min_u32 v%d, %d, v%d" % (T + 2, 27 * FS, vFl))
    a("s_and_b32 %s, %s, 3\ns_lshl_b32 %s, %s, 1\ns_add_u32 %s, %s, %s\ns_mul_i32 %s, %s, %d\ns_add_u32 %s, %s, %d"
      % (sA, sTB, sA, sA, sA, sA, sTH, sA, sA, 32 * FS, sA, sA, YF_OFF))
    a(yf_load, optional=True)
    a("ds_read_b64 %s, v%d offset:16" % (vr(T + 4, 2), vTmp), optional=True)
    a("s_branch L_y1_ret")
    a.label("L_y2")
    if cfg.get("noffn") or cfg.get("x_ffnpar") is not None:
        a("s_branch L_y2_ret")
    a("s_waitcnt vmcnt(0)")
    a(yf_check[0] + "\ns_cbranch_vccz L_yf_done")
    poll("L_yfpoll", [yf_load], yf_check, sleep=4, wait="vmcnt(0)")
    a.label("L_yf_done")
    a("s_and_b32 %s, %s, 3\ns_lshl_b32 %s, %s, 3\ns_add_u32 %s, %s, %s\ns_lshl_b32 %s, %s, 7\ns_add_u32 %s, %s, %d"
      % (sA, sTB, sA, sA, sA, sA, sW, sA, sA, sA, sA, Y_OFF))
    a("v_and_b32 v%d, 15, v0\nv_and_b32 v%d, 48, v0\nv_lshlrev_b32 v%d, 8, v%d\nv_lshl_add_u32 v%d, v%d, 3, v%d" % (T + 2, T + 3, T + 3, T + 3, T + 3, T + 2, T + 3))
    for i in range(7):
        a("buffer_load_dwordx2 %s, v%d, %s, %s offen sc1" % (vr(YB + 2 * i, 2), T + 3, SWS, sA), optional=True)
        a("s_add_u32 %s, %s, 16384" % (sA, sA))
    a("s_branch L_y2_ret")
    a.label("L_y3")
    U = T + 4
    a("s_mov_b32 vcc_lo, 0\ns_mov_b32 vcc_hi, -1\nv_cndmask_b32 v%d, v%d, v%d, vcc" % (U, U, U + 1))
    a("v_ashrrev_i32 v%d, 31, v%d\nv_not_b32 v%d, v%d\nv_or_b32 v%d, 0x80000000, v%d\nv_xor_b32 v%d, v%d, v%d\nv_and_b32 v%d, 0xffff0000, v%d"
      % (U + 1, U, U + 1, U + 1, U + 1, U + 1, U, U, U + 1, U, U))
    a("v_mul_f32 v%d, %s, v%d\nv_exp_f32 v%d, v%d\nv_add_f32 v%d, 1.0, v%d\nv_rcp_f32 v%d, v%d" % (U, f32(-LOG2E), U, U, U, U, U, U, U))
    bf16_round(U, U)
    a("v_and_b32 v%d, 15, v0\nv_and_b32 v%d, 32, v0\nv_lshl_add_u32 v%d, v%d, 2, v%d\nv_lshl_add_u32 v%d, %s, 4, v%d\nv_lshlrev_b32 v%d, 2, v%d\nv_add_u32 v%d, %d, v%d"
      % (U + 2, U + 3, U + 2, U + 3, U + 2, U + 2, sW, U + 2, U + 2, U + 2, U + 2, L_UPD, U + 2))
    a("s_waitcnt vmcnt(2)")
    for i in range(1, 7):
        a("v_pk_add_f32 %s, %s, %s" % (vr(YB, 2), vr(YB, 2), vr(YB + 2 * i, 2)))
    a("v_permlane32_swap_b32 v%d, v%d\nv_add_f32 v%d, v%d, v%d\nv_mov_b32 v%d, v%d" % (YB, YB + 1, YB, YB, YB + 1, YB + 1, YB))
    a("v_permlane16_swap_b32 v%d, v%d\nv_add_f32 v%d, v%d, v%d" % (YB, YB + 1, YB, YB, YB + 1))
    bf16_round(YB, YB)
    a("v_mul_f32 v%d, v%d, v%d" % (YB, YB, U))
    bf16_round(YB, YB)
    a("ds_write_b32 v%d, v%d" % (U + 2, YB), optional=True)
    a("s_branch L_y3_ret")

    for (lbl, u) in grpwaits:
        a.label(lbl)
        two_stage(lbl, True, hint_load(CK + 1), [flag_load(CK + 1)], grp_check(u), 8 if u == 1 else 12)
        a("s_branch %s_ret" % lbl)

    a.label("L_fallback")
    a("s_nop 7")
    a("s_lshl_b32 %s, %s, 19\ns_lshl_b32 %s, %s, 11\ns_add_u32 %s, %s, %s\nv_add_u32 v%d, %s, v1" % (sT0, sHG, sT1, sHH, sT0, sT0, sT1, T, sT0))
    a("v_mov_b32 v%d, 0xff800000\ns_mov_b32 %s, 0" % (T + 1, sT2))
    def fb_off():
        a("s_lshl_b32 %s, %s, 13" % (sT0, sT2))
    a.label("L_fb1")
    fb_off()
    a("buffer_load_dwordx4 %s, v%d, %s, %s offen sc1" % (vr(KVB(0), 4), T, SWS, sT0), optional=True)
    a("s_waitcnt vmcnt(0)")
    qk(SA, 0, QB)
    for i in range(8):
        a("v_max3_f32 v%d, v%d, v%d, v%d" % (T + 1, SA + 2 * i, SA + 2 * i + 1, T + 1))
    a("s_add_u32 %s, %s, 1\ns_cmp_lt_u32 %s, 64\ns_cbranch_scc1 L_fb1" % (sT2, sT2, sT2))
    a("v_mov_b32 v%d, v%d\nv_permlane32_swap_b32 v%d, v%d\nv_max_f32 v%d, v%d, v%d" % (T + 2, T + 1, T + 1, T + 2, T + 1, T + 1, T + 2))
    for i in range(16):
        a("v_sub_f32 v%d, 0, v%d\nv_mov_b32 v%d, 0" % (SB + i, T + 1, OB + i))
    a("s_mov_b32 %s, 0" % sT2)
    a.label("L_fb2")
    fb_off()
    a("buffer_load_dwordx4 %s, v%d, %s, %s offen sc1" % (vr(KVB(0), 4), T, SWS, sT0), optional=True)
    a("s_mov_b64 exec, %s" % sVM)
    a("buffer_load_dwordx4 %s, v%d, %s, %s offen offset:1024 sc1" % (vr(KVB(0) + 4, 4), T, SWS, sT0), optional=True)
    a("buffer_load_dwordx4 %s, v%d, %s, %s offen offset:1280 sc1" % (vr(KVB(0) + 8, 4), T, SWS, sT0), optional=True)
    a("s_mov_b64 exec, -1\ns_waitcnt vmcnt(0)")
    a("v_mfma_f32_32x32x16_bf16 %s, %s, %s, %s" % (vr(SA, 16), vr(KVB(0), 4), vr(QB, 4), vr(SB, 16)))
    ex(SA, 0, 16)
    pv(OB, 0, 0, SA)
    pv(OB, 0, 1, SA)
    a("s_add_u32 %s, %s, 1\ns_cmp_lt_u32 %s, 64\ns_cbranch_scc1 L_fb2" % (sT2, sT2, sT2))
    a("s_nop 15\nv_rcp_f32 v%d, v%d\ns_nop 1\ns_branch L_fallback_ret" % (OB + 8, OB + 8))

    a.label("L_end")
    a("s_endpgm")
    a.raw('.section .rodata,"a"')
    a.raw(".p2align 6")
    a.raw(".amdhsa_kernel %s_kernel" % NAME)
    a.raw("""  .amdhsa_next_free_vgpr 256
  .amdhsa_next_free_sgpr 102
  .amdhsa_accum_offset 256
  .amdhsa_group_segment_fixed_size 0
  .amdhsa_kernarg_size 88
  .amdhsa_user_sgpr_count 2
  .amdhsa_user_sgpr_kernarg_segment_ptr 1
  .amdhsa_system_sgpr_workgroup_id_x 1
.end_amdhsa_kernel""")
    text = a.render()
    bad = verify(text)
    assert not bad, bad
    return text, stamps


HEADER = """; out = x + (MHA(LN(x)) @ Wo) * silu(LN(x) + routed SwiGLU update of the two top-scoring tokens)
;     ones in the V operand give the row sums.  The softmax shift is 0; the row sums are checked at run time and a
; write-through copy), so placement only changes speed.  O slots are emptied (all-ones) and acknowledged earlier in the
"""

if __name__ == "__main__":
    out = sys.argv[1] if len(sys.argv) > 1 else "cdna_kernels/%s.s" % NAME
    text, _ = generate()
    open(out, "w").write(HEADER + text)
    print("wrote", out, len(text), "bytes")
```

```python
import sys, os, math, struct
sys.path.insert(0, os.path.dirname(os.path.abspath(__file__)))
from asmlib import Asm, verify

NAME = "recurrent_scan__softmax_full_mha__moe_arch_mod__prompt"

KV_OFF = 0
O_OFF = 0x400000
CT = 0x600000
NONCE_OFF = CT
CAND_OFF = CT + 0x1000
HINT_OFF = CT + 0x2000
GUH_OFF = CT + 0x3000
YF_OFF = CT + 0x6000
ST_OFF = CT + 0x8000
GUF_OFF = CT + 0x20000
KVF_OFF = CT + 0x40000
CLF_OFF = CT + 0x60000
EH_OFF = CT + 0xE0000
GU_OFF = CT + 0x80000
Y_OFF = CT + 0xC0000
DBG_OFF = 0x800000
WS_BASE = 0
WS_BYTES = 0x1000000
FS = 32

L_X = 0
L_RING = 65536
NSLOT = 5
L_GU = 131072
L_DN = 147456
L_MISC = 155648
L_WR = L_MISC
L_M = L_MISC + 1024
L_R = L_M + 256
L_RR = L_R + 256
L_P = L_RR + 256
L_SEL = L_MISC + 2048
L_H = L_SEL + 256
L_UPD = L_MISC + 3072
L_ZERO = L_UPD + 1024
L_LS = L_MISC + 6144
L_INBOX = 98304
LDS_BYTES = 163840

SPIN_MAX = 1 << 16

def f32(x):
    return "0x%08x" % struct.unpack("<I", struct.pack("<f", x))[0]

LOG2E = math.log2(math.e)


def generate(cfg=None):
    cfg = cfg or {}
    STAMP = cfg.get("stamp", False)
    AMP = cfg.get("amp")
    PK = cfg.get("pk", True)
    KFS = 128
    a = Asm()
    stamps = []

    def stamp(name):
        if AMP and name == AMP[0]:
            a("s_memrealtime s[96:97]\ns_waitcnt lgkmcnt(0)")
        if AMP and name == AMP[1]:
            a("s_memrealtime s[98:99]\ns_waitcnt lgkmcnt(0)")
        if STAMP and (name in ("kernarg", "end") or "only" not in cfg or name in cfg["only"]):
            if name not in stamps:
                stamps.append(name)
            i = stamps.index(name)
            a("%s s[68:69]" % ("s_memrealtime" if cfg.get("rt") else "s_memtime"))
            a("s_waitcnt lgkmcnt(0)\ns_mov_b32 s%d, s68" % (85 + i))

    sW, sTB, sHG, sHH, sTH = "s3", "s4", "s5", "s6", "s7"
    SX, SWQ, SWS, SWO, SOUT, SG, SU, SD, SWR = ["s[%d:%d]" % (8 + 4 * i, 11 + 4 * i) for i in range(9)]
    sN, sM0, sRot, sKx, sKw, sT0, sT1, sT2, sT3 = "s44", "s45", "s46", "s47", "s48", "s49", "s50", "s51", "s52"
    sGrp, sCnt, sLB = "s53", "s54", "s55"
    sVM = "s[56:57]"
    sP0, sP1 = "s[58:59]", "s[60:61]"
    sA, sB, sC, sD_, sE, sF = "s62", "s63", "s64", "s65", "s66", "s67"
    sOP, sCLp, sOC, sCLc, sFl, sEHc, sHint, sQ3, sMask, sCW, sFg, sFd = ["s%d" % i for i in range(70, 82)]
    sAux = "s[82:83]"
    sFB, sFJ = "s1", "s0"

    vOut, vL4, vWoA, vWoD, vIdx, vZ, vNn, vFl = 2, 3, 4, 5, 6, 7, 8, 9
    vKV = 10
    vSw, vSr, vLw, vLr, vOw, vOr, vSt, vTok, vUp, vFg, vFd = range(14, 25)
    vIn, vTmp = 25, 26
    XT, OA, OB, QA, QB = 28, 32, 48, 64, 68
    NB = 6
    KVB = lambda b: 72 + 12 * b
    CK = 144
    SA, SB = 150, 166
    T = 182
    vFk = 148
    vHi = 149
    WO = 192

    vr = lambda i, n: "v[%d:%d]" % (i, i + n - 1)

    a.raw("; @launch grid=(256,1,1) block=(512,1,1) lds=%d" % LDS_BYTES)
    a.raw('.amdgcn_target "amdgcn-amd-amdhsa--gfx950"')
    a.raw(".text")
    a.raw(".globl %s_kernel" % NAME)
    a.raw(".p2align 8")
    a.raw(".type %s_kernel,@function" % NAME)
    a.label("%s_kernel" % NAME)

    a("s_cmp_ge_u32 s2, 256\ns_cbranch_scc1 L_end")
    for _ in range(cfg.get("x_sleep0", 0)):
        a("s_sleep 16")
    if AMP:
        a("s_mov_b32 s96, 0\ns_mov_b32 s98, 0\ns_load_dwordx2 s[90:91], s[0:1], 72")
    if AMP and AMP[0] == "start":
        a("s_memrealtime s[96:97]")
    if STAMP:
        a("s_memrealtime s[82:83]")
    def ptr_loads(lst):
        for (srd, off) in lst:
            a("s_load_dwordx2 s[%d:%d], s[0:1], %d" % (srd, srd + 1, off))
    P_FIRST, P_REST = ((8, 0), (12, 8), (40, 32)), ((16, 80), (20, 16), (24, 64), (28, 40), (32, 48), (36, 56))
    ptr_loads(P_FIRST)
    if not cfg.get("split_ka", 1):
        ptr_loads(P_REST)
    vXd, vWd, vXa0, vXa1, vWa, vWa2 = 246, 247, 248, 249, 250, 251
    t0, t1, t2, t3, t4 = 150, 151, 152, 153, 154
    a("v_readfirstlane_b32 %s, v0\nv_and_b32 v0, 63, v0" % sW)
    HYB = cfg.get("hybrid", 0)
    if HYB == 0:
        a("s_and_b32 %s, s2, 7\ns_lshr_b32 %s, s2, 3" % (sHG, sTB))
    elif HYB == 1:
        a("s_and_b32 %s, s2, 3\ns_lshl_b32 %s, %s, 1\ns_bfe_u32 %s, s2, 0x10003\ns_add_u32 %s, %s, %s" % (sHG, sHG, sHG, sT0, sHG, sHG, sT0))
        a("s_and_b32 %s, s2, 4\ns_lshl_b32 %s, %s, 2\ns_lshr_b32 %s, s2, 4\ns_add_u32 %s, %s, %s" % (sTB, sTB, sTB, sT0, sTB, sTB, sT0))
    elif HYB == 2:
        a("s_and_b32 %s, s2, 1\ns_lshl_b32 %s, %s, 2\ns_bfe_u32 %s, s2, 0x20003\ns_add_u32 %s, %s, %s" % (sHG, sHG, sHG, sT0, sHG, sHG, sT0))
        a("s_and_b32 %s, s2, 6\ns_lshl_b32 %s, %s, 2\ns_lshr_b32 %s, s2, 5\ns_add_u32 %s, %s, %s" % (sTB, sTB, sTB, sT0, sTB, sTB, sT0))
    a("s_mov_b32 s10, %d\ns_mov_b32 s11, 0x20000\ns_mov_b32 s18, %d\ns_mov_b32 s19, 0x20000" % (2048 * 1024, WS_BYTES))
    a("v_lshlrev_b32 v1, 4, v0\nv_lshrrev_b32 v%d, 4, v0" % t2)
    if cfg.get("swapw"):
        a("s_xor_b32 %s, %s, 0x100" % (sW, sW))
    a("s_lshr_b32 %s, %s, 6\ns_and_b32 %s, %s, 3\ns_lshl_b32 %s, %s, 10\ns_lshr_b32 %s, %s, 2" % (sW, sW, sHH, sW, sLB, sHH, sTH, sW))
    def code_prefetch():
        PFB = 320
        a("s_lshr_b32 %s, s2, 3" % sT3)
        a("s_getpc_b64 s[60:61]")
        a.label("L_pc")
        a("s_lshl_b32 %s, %s, 2\ns_add_u32 %s, %s, %s\ns_mul_i32 %s, %s, %d" % (sT2, sT3, sT2, sT2, sHH, sT2, sT2, PFB))
        a("s_min_u32 %s, %s, L_end-L_pc-%d" % (sT2, sT2, PFB))
        a("s_add_u32 s60, s60, %s\ns_addc_u32 s61, s61, 0" % sT2)
        for i in range(PFB // 64):
            a("s_load_dword %s, s[60:61], %d" % (sCnt, 64 * i))
    if cfg.get("pfc", 1):
        a("s_cbranch_scc1 L_loader")
        code_prefetch()
        a("s_branch L_compute")
        a.label("L_loader")
    else:
        a("s_cbranch_scc0 L_compute")
    a("s_setprio %d" % cfg.get("ldprio", 1))
    ROT = cfg.get("rot", 2)
    if ROT == 0:
        a("s_add_u32 %s, %s, %s\ns_and_b32 %s, %s, 7" % (sRot, sTB, sHG, sRot, sRot))
    elif ROT == 1:
        a("s_and_b32 %s, %s, 7" % (sRot, sTB))
    elif ROT == 2:
        a("s_lshl_b32 %s, %s, 1\ns_add_u32 %s, %s, %s\ns_and_b32 %s, %s, 7" % (sRot, sHG, sRot, sRot, sTB, sRot, sRot))
    elif ROT == 4:
        a("s_lshl_b32 %s, %s, 1\ns_add_u32 %s, %s, %s\ns_and_b32 %s, %s, 7" % (sRot, sTB, sRot, sRot, sHG, sRot, sRot))
    elif ROT == 5:
        a("s_mov_b32 %s, %s" % (sRot, sHG))
    elif ROT == 3:
        a("s_lshl_b32 %s, %s, 2\ns_add_u32 %s, %s, %s\ns_and_b32 %s, %s, 7" % (sRot, sHG, sRot, sRot, sTB, sRot, sRot))
    a("v_lshrrev_b32 v%d, 3, v0\nv_and_b32 v%d, 7, v0" % (t0, t1))
    a("s_and_b32 %s, %s, 1\ns_lshl_b32 %s, %s, 2" % (sT0, sW, sT0, sT0))
    a("v_xor_b32 v%d, %s, v%d" % (t4, sT0, t1))
    a("s_lshl_b32 %s, %s, 3\ns_add_u32 %s, %s, %s\ns_lshl_b32 %s, %s, 13" % (sT1, sTB, sT1, sT1, sHH, sT1, sT1))
    a("v_xor_b32 v%d, v%d, v%d" % (t3, t4, t2))
    a("v_lshl_add_u32 v%d, v%d, 6, v%d\nv_lshl_add_u32 v%d, v%d, 4, %s" % (vXd, t0, t3, vXd, vXd, sT1))
    a("v_and_b32 v%d, 2, v%d\nv_xor_b32 v%d, v%d, v%d" % (vWd, t0, t4, t4, vWd))
    a("s_mul_i32 %s, %s, %d\ns_lshl_b32 %s, %s, 7\ns_add_u32 %s, %s, %s" % (sT1, sHH, 8 * 3072, sT2, sHG, sT1, sT1, sT2))
    a("v_mul_u32_u24 v%d, 192, v%d\nv_add_lshl_u32 v%d, v%d, v%d, 4\nv_add_u32 v%d, %s, v%d" % (vWd, t0, vWd, vWd, t4, vWd, sT1, vWd))
    a("s_mov_b32 %s, %s\ns_mov_b32 %s, %s" % (sKx, sRot, sKw, sRot))
    a("s_mov_b32 s14, %d\ns_mov_b32 s15, 0x20000\ns_mov_b32 s42, 1024\ns_mov_b32 s43, 0x20000" % (512 * 3072))
    def first_stamp():
        if STAMP:
            a("s_mov_b32 s84, s82")
        stamp("kernarg")
        if STAMP:
            for i in range(86, 101):
                a("s_mov_b32 s%d, s85" % i)
            a("s_mov_b32 s101, 0")
    def ws_window():
        a("s_mov_b32 s82, 0x22222222\ns_mov_b32 s83, 0x22222222")
        if cfg.get("wsoff", WS_BASE):
            a("s_add_u32 s16, s16, %d\ns_addc_u32 s17, s17, 0" % cfg.get("wsoff", WS_BASE))
    a("s_waitcnt lgkmcnt(0)")

    def slot(c):
        return L_RING + (c % NSLOT) * 16384

    def dma_x(c, h):
        if h == 0:
            a("s_lshl_b32 %s, %s, 7\ns_add_u32 m0, %s, %d" % (sT0, sKx, sLB, L_X + c * 8192))
            a("s_add_u32 %s, %s, 1" % (sKx, sKx))
        else:
            a("s_add_u32 m0, %s, %d\ns_add_u32 %s, %s, 32768" % (sLB, L_X + c * 8192 + 4096, sT0, sT0))
        a("buffer_load_dwordx4 v%d, %s, %s offen %s lds" % (vXd, SX, sT0, cfg.get("xmod", "") if c < cfg.get("xmodn", 8) else ""), tag="x%d" % c)
        if h == 0:
            a("s_and_b32 %s, %s, 7" % (sKx, sKx))

    def dma_w(c, m, h):
        if h == 0:
            a("s_mul_i32 %s, %s, %d\ns_add_u32 m0, %s, %d" % (sT1, sKw, 64 * 3072, sLB, slot(c) + 8192 * m))
            a("s_add_u32 %s, %s, %d" % (sT1, sT1, 1024 * (m + 1) if c < 8 else 0))
        else:
            a("s_add_u32 m0, %s, %d\ns_add_u32 %s, %s, %d" % (sLB, slot(c) + 8192 * m + 4096, sT1, sT1, 32 * 3072))
        a("buffer_load_dwordx4 v%d, %s, %s offen %s lds" % (vWd, SWQ, sT1, cfg.get("wmod", "") if c < cfg.get("wmodn", 12) else ""), tag="w%d" % c)
        if h == 1 and (m == 1 or c >= 8):
            a("s_add_u32 %s, %s, 1\ns_and_b32 %s, %s, 7" % (sKw, sKw, sKw, sKw))

    xl = lambda c: [lambda h=h: dma_x(c, h) for h in range(2)]
    wl = lambda c: [lambda m=m, h=h: dma_w(c, m, h) for m in range(2) for h in range(2)]

    ONES, AD = 242, 252

    def init_phase1():
        a("v_and_b32 v%d, 15, v0\nv_lshrrev_b32 v%d, 1, v%d\nv_xor_b32 v%d, v%d, v%d" % (t1, t3, t1, t3, t3, t2))
        a("v_lshlrev_b32 v%d, 7, v%d\nv_lshl_add_u32 v%d, v%d, 4, v%d\nv_xor_b32 v%d, 64, v%d" % (vXa0, t1, vXa0, t3, vXa0, vXa1, vXa0))
        a("v_bfe_u32 v%d, v0, 2, 2\nv_bfe_u32 v%d, v0, 3, 2\nv_and_b32 v%d, 3, v0\nv_xor_b32 v%d, %s, v%d" % (t0, t3, t4, t3, sHH, t3))
        a("v_lshl_add_u32 v%d, v%d, 3, v%d\nv_lshl_add_u32 v%d, v%d, 2, v%d\nv_lshl_add_u32 v%d, v%d, 2, v%d" % (vWa, t2, t0, vWa, vWa, t3, vWa, vWa, t4))
        a("v_lshlrev_b32 v%d, 3, v%d\nv_add_u32 v%d, %d, v%d\nv_add_u32 v%d, 32768, v%d" % (vWa, vWa, vWa, L_RING, vWa, vWa2, vWa))
        a("v_mov_b32 v%d, 0x3f803f80\nv_mov_b32 v%d, v%d\nv_mov_b64 %s, %s" % (ONES, ONES + 1, ONES, vr(ONES + 2, 2), vr(ONES, 2)))

    def init_rest(u0):
        u1, u2, u3 = u0 + 1, u0 + 2, u0 + 3
        L = []
        L.append("s_mov_b32 s22, %d\ns_mov_b32 s23, 0x20000\ns_mov_b32 s26, %d\ns_mov_b32 s27, 0x20000" % (512 * 1024, 2048 * 1024))
        L.append("s_mov_b32 s30, %d\ns_mov_b32 s31, 0x20000\ns_mov_b32 s38, %d\ns_mov_b32 s39, 0x20000" % (512 * 3584, 1792 * 1024))
        L.append("s_mov_b32 s56, 0xffff\ns_mov_b32 s57, 0xffff\ns_lshl_b32 %s, %s, 10" % (sM0, sW))
        L.append("v_lshlrev_b32 v%d, 2, v0\nv_mov_b32 v%d, 0\nv_mov_b32 v%d, 0xdddddddd" % (vL4, vZ, vIdx))
        L.append("v_and_b32 v%d, 11, v0\nv_cmp_eq_u32 vcc, 0, v%d\nv_add_u32 v%d, %s, v1\nv_add_u32 v%d, %d, v%d\nv_cndmask_b32 v%d, 0, v%d, vcc\nv_mov_b32 v%d, v%d"
                 % (u0, u0, vIn, sM0, vIn, L_INBOX, vIn, KVB(0) + 4, ONES, KVB(0) + 5, KVB(0) + 4))
        for b in range(NB):
            L.append("\n".join("v_mov_b64 %s, %s" % (vr(KVB(b) + 4 + i, 2), vr(KVB(0) + 4, 2)) for i in range(0, 8, 2) if b or i))
        L.append("s_lshl_b32 %s, %s, 8\ns_add_u32 %s, %s, %s\nv_lshl_add_u32 v%d, %s, 11, v1" % (sT2, sHG, sT2, sT2, sW, u0, sT2))
        for i in range(4):
            L.append("s_add_u32 %s, %s, %d\ns_and_b32 %s, %s, 3\nv_lshl_add_u32 v%d, %s, 14, v%d" % (sT2, sTB, i, sT2, sT2, vKV + i, sT2, u0))
        L.append("s_lshr_b32 %s, %s, 2\ns_lshl_b32 %s, %s, 16\ns_lshl_b32 %s, %s, 3\ns_add_u32 %s, %s, %s" % (sT2, sTB, sGrp, sT2, sQ3, sHG, sQ3, sQ3, sT2))
        L.append("s_lshl_b32 %s, %s, 2\ns_add_u32 %s, %s, %s\ns_lshl_b32 %s, %s, 12\ns_add_u32 %s, %s, %d\ns_lshl_b32 %s, %s, 7\ns_add_u32 %s, %s, %d"
                 % (sT2, sHG, sT2, sT2, sHH, sFl, sT2, sFl, sFl, KVF_OFF, sHint, sT2, sHint, sHint, HINT_OFF))
        L.append("v_and_b32 v%d, 124, v%d\nv_lshlrev_b32 v%d, 3, v%d\nv_lshlrev_b32 v%d, 5, v%d\nv_and_b32 v%d, 12, v%d" % (vHi, vL4, vFl, vHi, vFk, vHi, vSt, vL4))
        L.append("s_and_b32 %s, %s, 3\ns_lshl_b32 %s, %s, 8\ns_lshl_b32 %s, %s, 13\ns_add_u32 %s, %s, %s" % (sA, sTB, sA, sA, sT2, sW, sT2, sT2, sA))
        L.append("v_lshrrev_b32 v%d, 3, v0\nv_and_b32 v%d, 7, v0\nv_and_b32 v%d, 6, v%d\nv_xor_b32 v%d, v%d, v%d" % (u0, u1, u2, u0, u2, u2, u1))
        L.append("v_lshl_add_u32 v%d, v%d, 6, v%d\nv_lshl_add_u32 v%d, v%d, 4, %s" % (u2, u0, u2, vWoD, u2, sT2))
        L.append("s_lshl_b32 %s, %s, 16\nv_and_b32 v%d, 0x9ff, v%d\nv_and_b32 v%d, 16, v0\nv_lshl_add_u32 v%d, v%d, 5, v%d\nv_add_u32 v%d, %s, v%d"
                 % (sT2, sTH, vWoA, vWa, u2, vWoA, u2, vWoA, vWoA, sT2, vWoA))
        L.append("s_cmp_eq_u32 %s, 2\ns_cselect_b32 %s, 2, 7\ns_cselect_b32 %s, 4, %s\ns_lshr_b32 %s, %s, 1\ns_lshl_b32 %s, %s, 13\ns_add_u32 %s, %s, %d\ns_lshl_b32 %s, %s, 9"
                 % (sW, sT3, sFd, sW, sFd, sFd, sFd, sFd, sFd, sFd, L_GU, sT3, sT3))
        L.append("v_and_b32 v%d, 2, v%d\nv_mul_u32_u24 v%d, %s, v%d\nv_xor_b32 v%d, v%d, v%d\nv_lshl_add_u32 v%d, v%d, 4, v%d\nv_xor_b32 v%d, 64, v%d"
                 % (u2, u0, u0, sT3, u0, u1, u1, u2, vFg, u1, u0, vFd, vFg))
        L.append("s_lshl_b32 %s, %s, 5\nv_xor_b32 v%d, %s, v%d\ns_sub_u32 %s, %s, %d\nv_add_u32 v%d, %s, v%d" % (sT2, sHH, AD, sT2, vWa, sT2, sFd, L_RING, AD, sT2, AD))
        L.append("\n".join("v_xor_b32 v%d, %d, v%d" % (AD + t, t << 5, AD) for t in range(1, 4)))
        L.append("s_lshl_b32 %s, %s, 5\ns_add_u32 %s, %s, %s\ns_lshl_b32 %s, %s, 1\ns_add_u32 %s, %s, %s" % (sT2, sHG, sT2, sT2, sTB, sT3, sT2, sT3, sT3, sTH))
        L.append("s_lshl_b32 %s, %s, 12\ns_add_u32 %s, %s, %s\ns_add_u32 %s, %s, %d" % (sOP, sT3, sOP, sOP, sLB, sOP, sOP, O_OFF))
        L.append("s_lshl_b32 %s, %s, 5\ns_add_u32 %s, %s, %s\ns_lshl_b32 %s, %s, 2\ns_add_u32 %s, %s, %d" % (sCLp, sT3, sCLp, sCLp, sHH, sCLp, sCLp, sCLp, sCLp, CLF_OFF))
        L.append("s_lshl_b32 %s, %s, 6\ns_add_u32 %s, %s, %s\ns_lshl_b32 %s, %s, 12\ns_add_u32 %s, %s, %d" % (sT3, sW, sT3, sT3, sQ3, sOC, sT3, sOC, sOC, O_OFF))
        L.append("s_lshl_b32 %s, %s, 7\ns_add_u32 %s, %s, %d\ns_lshr_b32 %s, %s, 1\ns_lshl_b32 %s, %s, 9\ns_add_u32 %s, %s, %d"
                 % (sCLc, sT3, sCLc, sCLc, CLF_OFF, sEHc, sT3, sEHc, sEHc, sEHc, sEHc, EH_OFF))
        L.append("v_and_b32 v%d, 31, v0\nv_lshl_add_u32 v%d, %s, 5, v%d\nv_and_b32 v%d, 32, v0\nv_lshl_add_u32 v%d, %s, 6, v%d" % (u0, vTok, sQ3, u0, u1, vUp, sW, u1))
        L.append("v_lshrrev_b32 v%d, 1, v%d\nv_lshl_add_u32 v%d, v%d, 10, v%d\nv_add_u32 v%d, %s, v%d" % (u1, vUp, vOut, vTok, u1, vOut, sA, vOut))
        L.append("v_mov_b64 %s, -1\nv_mov_b64 %s, -1\nv_lshl_add_u32 v%d, %s, 12, v1" % (vr(XT, 2), vr(XT + 2, 2), vOw, sW))
        L.append("v_and_b32 v%d, 0x300, v1\nv_add_u32 v%d, v%d, v1" % (u0, vOr, u0))
        L.append("v_lshl_add_u32 v%d, %s, 11, v1\nv_add_u32 v%d, %d, v%d\nv_xor_b32 v%d, 8192, v%d" % (vSr, sW, vSr, L_GU, vSr, vSw, vSr))
        L.append("v_lshl_add_u32 v%d, %s, 8, v%d\nv_add_u32 v%d, %d, v%d\nv_xor_b32 v%d, 1024, v%d" % (vLr, sW, vL4, vLr, L_LS, vLr, vLw, vLr))
        return L

    tag_load = "s_add_u32 s58, s16, %d\ns_addc_u32 s59, s17, 0\ns_load_dword %s, s[58:59], 0" % (NONCE_OFF, sN)
    tag_final = "s_mul_i32 %s, %s, 1664525\ns_add_u32 %s, %s, 1013904223\nv_mov_b32 v%d, %s" % (sN, sN, sN, sN, vNn, sN)
    ffn_unit = "s_lshr_b32 %s, %s, 3\ns_lshl_b32 %s, %s, 2\ns_add_u32 %s, %s, %s\ns_and_b32 %s, %s, 7" % (sT2, sTB, sFB, sHG, sFB, sFB, sT2, sFJ, sTB)
    if cfg.get("x_ffnpar") is not None:
        ffn_unit += "\ns_bitcmp%d_b32 %s, 0\ns_cselect_b32 %s, 31, %s" % (cfg["x_ffnpar"], sHG, sFB, sFB)

    for f in xl(0) + wl(0)[:2]:
        f()
    if cfg.get("split_ka", 1):
        ptr_loads(P_REST)
    for f in wl(0)[2:]:
        f()
    a("s_lshl_b32 %s, %s, 1\ns_add_u32 %s, %s, %s" % (sT2, sHH, sT2, sT2, sRot))
    a("v_add_u32 v%d, %s, v%d\nv_and_b32 v%d, 7, v%d\nv_lshlrev_b32 v%d, 7, v%d\nv_lshl_add_u32 v%d, v%d, 4, v%d" % (t3, sT2, t0, t3, t3, t3, t3, t3, t1, t3))
    a("s_lshl_b32 %s, %s, 8\ns_add_u32 m0, %s, %d\ns_mov_b64 exec, 0xffff" % (sT2, sHH, sT2, L_WR))
    a("buffer_load_dwordx4 v%d, %s, 0 offen lds" % (t3, SWR), tag="w0")
    a("s_mov_b64 exec, -1")
    for f in xl(1):
        f()
    a("s_waitcnt lgkmcnt(0)")
    first_stamp()
    ws_window()
    if not cfg.get("pfc", 1):
        code_prefetch()
    a(tag_load)
    a(ffn_unit)
    a("s_lshl_b32 %s, %s, 9\ns_add_u32 %s, %s, %d\ns_lshr_b32 %s, %s, 3\ns_add_u32 %s, %s, %s" % (sT2, sHG, sT2, sT2, HINT_OFF, sT3, sLB, sT2, sT2, sT3))
    a("s_lshl_b32 %s, %s, 7\ns_add_u32 %s, %s, %d" % (sT3, sFB, sT3, sT3, GUH_OFF))
    a("s_buffer_load_dword %s, %s, %s\ns_buffer_load_dword %s, %s, %s offset:64\ns_buffer_load_dword %s, %s, %s" % (sCnt, SWS, sT2, sCnt, SWS, sT2, sCnt, SWS, sT3))
    init_phase1()

    def tr_read(dst, addr, off, tag, second=512, optional=False):
        a("ds_read_b64_tr_b16 %s, v%d offset:%d" % (vr(dst, 2), addr, off), tag=tag, optional=optional)
        a("ds_read_b64_tr_b16 %s, v%d offset:%d" % (vr(dst + 2, 2), addr, off + second), tag=tag, optional=optional)

    def ring_addr(off):
        off -= L_RING
        return (vWa, off) if off < 32768 else (vWa2, off - 32768)

    def mfma16(d, A, B, first):
        a("v_mfma_f32_16x16x32_bf16 %s, %s, %s, %s" % (vr(d, 4), vr(A, 4), vr(B, 4), "0" if first else vr(d, 4)))

    def bf16_round(dst, src):
        a("v_cvt_pk_bf16_f32 v%d, v%d, v%d\nv_lshlrev_b32 v%d, 16, v%d" % (dst, src, src, dst, dst))

    def interleave(xs, ys):
        xs, ys = list(xs), list(ys)
        while xs or ys:
            if xs:
                xs.pop(0)()
            if ys:
                ys.pop(0)()

    def read_tok_stats(MK, RK, tmp, tag):
        a("v_and_b32 v%d, 15, v0\nv_lshlrev_b32 v%d, 2, v%d\nv_add_u32 v%d, %d, v%d" % (tmp, tmp, tmp, tmp, L_M, tmp))
        a("ds_read2_b32 %s, v%d offset0:0 offset1:16\nds_read2_b32 %s, v%d offset0:32 offset1:48" % (vr(MK, 2), tmp, vr(MK + 2, 2), tmp), tag=tag)
        a("ds_read2_b32 %s, v%d offset0:64 offset1:80\nds_read2_b32 %s, v%d offset0:96 offset1:112" % (vr(RK, 2), tmp, vr(RK + 2, 2), tmp), tag=tag)

    def norm_tok(acc, cs, MK, RK, tiles):
        for tt in tiles:
            if PK:
                s_ = tt & 1
                for r in (0, 2):
                    a("v_pk_fma_f32 %s, %s, %s, %s op_sel:[%d,0,0] op_sel_hi:[%d,1,1] neg_lo:[1,0,0] neg_hi:[1,0,0]"
                      % (vr(acc + 4 * tt + r, 2), vr(MK + (tt & 2), 2), vr(cs + r, 2), vr(acc + 4 * tt + r, 2), s_, s_))
            else:
                for r in range(4):
                    a("v_fma_f32 v%d, -v%d, v%d, v%d" % (acc + 4 * tt + r, MK + tt, cs + r, acc + 4 * tt + r))
        for tt in tiles:
            if PK:
                s_ = tt & 1
                for r in (0, 2):
                    a("v_pk_mul_f32 %s, %s, %s op_sel:[%d,0] op_sel_hi:[%d,1]" % (vr(acc + 4 * tt + r, 2), vr(RK + (tt & 2), 2), vr(acc + 4 * tt + r, 2), s_, s_))
            else:
                for r in range(4):
                    a("v_mul_f32 v%d, v%d, v%d" % (acc + 4 * tt + r, RK + tt, acc + 4 * tt + r))

    def pack(dst, acc):
        for i in range(4):
            a("v_cvt_pk_bf16_f32 v%d, v%d, v%d" % (dst + i, acc + 2 * i, acc + 2 * i + 1))

    def swap(dst):
        a("v_permlane16_swap_b32 v%d, v%d\nv_permlane16_swap_b32 v%d, v%d" % (dst, dst + 2, dst + 1, dst + 3))

    grpwaits = []
    KVM = cfg.get("kvmod", "sc1")
    KSM = cfg.get("ksmod", "sc1")
    def kv_load(s, optional=False, sfx=""):
        b, i = s % NB, s & 3
        if i == 0:
            lbl = "L_grp%d%s" % (s >> 2, sfx)
            grpwaits.append((lbl, s >> 2))
            a("s_and_b32 %s, %s, 0x%x\ns_cbranch_scc1 %s" % (sT0, sMask, 0xf << (s & ~3), lbl))
            a.label(lbl + "_ret")
            a("s_add_u32 %s, %s, 0x10000\ns_and_b32 %s, %s, 0x7ffff" % (sGrp, sGrp, sGrp, sGrp))
        tg = "t%d" % s
        a("buffer_load_dwordx4 %s, v%d, %s, %s offen %s" % (vr(KVB(b), 4), vKV + i, SWS, sGrp, KVM), tag=tg, optional=optional)
        a("s_mov_b64 exec, %s" % sVM)
        a("buffer_load_dwordx4 %s, v%d, %s, %s offen offset:1024 %s" % (vr(KVB(b) + 4, 4), vKV + i, SWS, sGrp, KVM), tag=tg, optional=optional)
        a("buffer_load_dwordx4 %s, v%d, %s, %s offen offset:1280 %s" % (vr(KVB(b) + 8, 4), vKV + i, SWS, sGrp, KVM), tag=tg, optional=optional)
        a("s_mov_b64 exec, -1")

    EARLY = cfg.get("early", [1, 2, 3])
    def early_loads(optional=False):
        for t in EARLY:
            kv_load(t, optional)

    a("; ======== loader waves")
    XSF, AUX, GR, AX = 150, 166, 182, 186
    vSa0, vSa1, vAa = 190, 191, 192
    a("v_lshl_add_u32 v%d, %s, 11, v%d\nv_xor_b32 v%d, 64, v%d" % (vSa0, sHH, vXa0, vSa1, vSa0))
    a("v_lshrrev_b32 v%d, 4, v0\nv_lshlrev_b32 v%d, 4, v%d\nv_add_u32 v%d, %d, v%d" % (vAa, vAa, vAa, vAa, L_WR, vAa))
    a("v_and_b32 v193, 3, v0\nv_cmp_eq_u32 vcc, 0, v193\nv_cndmask_b32 v%d, 0, v%d, vcc" % (AUX, ONES))
    a("v_mov_b32 v%d, v%d" % (AUX + 1, AUX))
    for i in range(2, 16, 2):
        a("v_mov_b64 %s, %s" % (vr(AUX + i, 2), vr(AUX, 2)))
    LA = cfg.get("la", 2)
    stamp("linit")
    if LA == 3:
        pro = xl(2) + xl(3) + wl(1) + xl(4) + wl(2)
        STAT = {0: [0], 1: [1, 2], 2: [3, 4], 3: [5], 4: [6], 5: [7]}
        plan = dict((c, (xl(c + 5) if c + 5 < 8 else []) + wl(c + 3)) for c in range(8))
        plan[7] = plan[6][2:] + plan[7] + wl(11)
        plan[6] = plan[6][:2]
    elif LA == 2:
        pro = wl(1) + xl(2)
        STAT = {1: [0, 1], 2: [2, 3], 3: [4], 4: [5], 5: [6], 6: [7]} if cfg.get("statlate", 0) else {0: [0], 1: [1], 2: [2, 3], 3: [4], 4: [5], 5: [6], 6: [7]}
        plan = dict((c, xl(c + 3) + wl(c + 2)) for c in range(5))
        w8, w9 = wl(8), wl(9)
        k6 = cfg.get("k6", 2)
        plan[5] = wl(7) + w8[:2]
        plan[6] = (w8[2:] + w9)[:k6]
        plan[7] = (w8[2:] + w9)[k6:] + wl(10) + wl(11)
    elif LA == 1:
        pro = wl(1) + xl(2)
        STAT = {0: [0], 1: [1], 2: [2, 3], 3: [4], 4: [5, 6], 5: [7]}
        w8, w9 = wl(8), wl(9)
        plan = {0: xl(3) + wl(2), 1: xl(4) + wl(3), 2: xl(5) + xl(6) + wl(4), 3: xl(7) + wl(5), 4: wl(6), 5: wl(7) + w8[:2], 6: w8[2:], 7: w9 + wl(10) + wl(11)}
    elif LA == 4:
        pro = wl(1)
        STAT = {1: [0, 1], 2: [2, 3], 4: [4, 5], 5: [6, 7]}
        w8, w9 = wl(8), wl(9)
        plan = {0: xl(2) + xl(3) + wl(2), 1: wl(3), 2: xl(4) + xl(5) + wl(4), 3: xl(6) + xl(7) + wl(5), 4: wl(6), 5: wl(7) + w8[:2], 6: w8[2:], 7: w9 + wl(10) + wl(11)}
    elif LA == 5:
        pro = xl(2) + xl(3) + wl(1)
        STAT = {1: [0, 1], 2: [2, 3], 3: [4, 5], 4: [6, 7]}
        w8, w9 = wl(8), wl(9)
        plan = {0: wl(2), 1: xl(4) + xl(5) + xl(6) + xl(7) + wl(3), 2: wl(4), 3: wl(5), 4: wl(6), 5: wl(7) + w8[:2], 6: w8[2:], 7: w9 + wl(10) + wl(11)}
    rest = init_rest(200)
    NE = cfg.get("nearly_init", 8)
    for t in rest[:NE]:
        a(t)
    rest = rest[NE:]
    for f in pro:
        f()
    stamp("lpro")
    nst = 0
    pend = []
    def stat_final():
        L = []
        L.append("s_mov_b32 s58, 0x44444444\ns_mov_b32 s59, 0x44444444\ns_mov_b32 s60, 0x88888888\ns_mov_b32 s61, 0x88888888")
        L.append("v_and_b32 v199, 15, v0\nv_lshl_add_u32 v199, %s, 4, v199\nv_lshlrev_b32 v199, 2, v199\nv_add_u32 v199, %d, v199" % (sHH, L_M))
        L.append("v_cndmask_b32 v194, v%d, v%d, %s\nv_cndmask_b32 v194, v194, v%d, %s\nv_cndmask_b32 v194, v194, v%d, %s"
                 % (GR, GR + 1, sAux, GR + 2, sP0, GR + 3, sP1))
        L.append("v_mul_f32 v195, %s, v%d\nv_mul_f32 v194, %s, v194" % (f32(1 / 512), AX, f32(1 / 512)))
        L.append("v_fma_f32 v194, -v195, v195, v194\nv_max_f32 v194, 0, v194")
        L.append("v_cvt_pk_bf16_f32 v196, v195, v194\nv_lshlrev_b32 v195, 16, v196\nv_and_b32 v194, 0xffff0000, v196")
        L.append("v_add_f32 v194, %s, v194\nv_cvt_pk_bf16_f32 v194, v194, v194\nv_lshlrev_b32 v194, 16, v194" % f32(1e-5))
        L.append("v_sqrt_f32 v194, v194\nv_fma_f32 v198, -v195, %s, v%d\nv_cvt_pk_bf16_f32 v194, v194, v194\nv_lshlrev_b32 v194, 16, v194" % (sCW, AX + 1))
        L.append("v_rcp_f32 v197, v194\nv_lshrrev_b32 v196, 16, v195\nv_or_b32 v196, v196, v194")
        L.append("v_mul_f32 v198, v198, v197\nv_cvt_pk_bf16_f32 v198, v198, v198\nv_lshlrev_b32 v198, 16, v198")
        L.append("s_mov_b32 s58, 0x00f0000f\ns_mov_b32 s59, 0xf0000f00\ns_mov_b64 exec, s[58:59]\n"
                 "ds_write2_b32 v199, v195, v197 offset0:0 offset1:64\nds_write2_b32 v199, v198, v196 offset0:128 offset1:192\ns_mov_b64 exec, -1")
        return [lambda t=t: a(t) for t in L]
    for c in range(8):
        a("; ---- stage chunk %d" % c)
        a.wait(vm=["w%d" % c, "x%d" % c] + ["x%d" % k for k in STAT.get(c, [])])
        a("s_barrier")
        if c in (0, 7) and AMP:
            stamp("chunk%d" % c)
        dm = plan[c]
        work = []
        if c == 7:
            work.append(lambda: read_tok_stats(230, 234, 193, "mk"))
        for i in range(len(pend)):
            def two(i=i, first=(nst == 0)):
                if first:
                    a("s_waitcnt lgkmcnt(0)")
                a.wait(lg="st")
                mfma16(GR, XSF + 4 * i, XSF + 4 * i, first)
                mfma16(AX, AUX + 4 * i, XSF + 4 * i, first)
            work.append(two)
            nst += 1
        if c == 2:
            work.append(lambda: a("v_lshlrev_b32 v198, 16, v194\nv_and_b32 v194, 0xffff0000, v194\nv_add_f32 v198, v198, v194"))
            for i in range(1, 4):
                work.append(lambda i=i: a("v_lshlrev_b32 v194, 16, v%d\nv_and_b32 v%d, 0xffff0000, v%d\nv_add_f32 v198, v198, v194\nv_add_f32 v198, v198, v%d" % (194 + i, 194 + i, 194 + i, 194 + i)))
        if c in (3, 4):
            pats = ("quad_perm:[1,0,3,2] row_mask:0xf", "quad_perm:[2,3,0,1] row_mask:0xf", "row_half_mirror row_mask:0xf",
                    "row_mirror row_mask:0xf", "row_bcast:15 row_mask:0xa", "row_bcast:31 row_mask:0xc")[3 * (c - 3):3 * (c - 2)]
            work.append(lambda pats=pats: a("\n".join("v_add_f32_dpp v198, v198, v198 %s bank_mask:0xf" % p for p in pats)))
        if c == 5:
            work.append(lambda: a("v_readlane_b32 %s, v198, 63" % sCW))
        pend = [(sc, ks) for sc in STAT.get(c, []) for ks in range(2)]
        if cfg.get("x_nostat") and c < 5:
            pend = []
        SO = 8 if c == 6 else 0
        if pend:
            tg = "st2" if c == 6 else "st"
            def xr(pend=pend):
                for i, (sc, ks) in enumerate(pend):
                    a("ds_read_b128 %s, v%d offset:%d" % (vr(XSF + SO + 4 * i, 4), vSa0 if ks == 0 else vSa1, L_X + sc * 8192), tag=tg)
            def ar(pend=pend):
                a("s_mov_b64 exec, %s" % sAux)
                for i, (sc, ks) in enumerate(pend):
                    a("ds_read_b128 %s, v%d offset:%d" % (vr(AUX + SO + 4 * i, 4), vAa, sc * 128 + ks * 64), tag=tg)
                a("s_mov_b64 exec, -1")
            if c == 6:
                xr(); ar()
            else:
                work += [xr, ar]
        if c == 0:
            work.append(lambda: a("v_add_u32 v193, %d, v1\nds_read_b128 v[194:197], v193" % L_WR, tag="st"))
        if c == 6:
            for i in range(len(pend)):
                def two2(i=i):
                    a.wait(lg="st2")
                    mfma16(GR, XSF + SO + 4 * i, XSF + SO + 4 * i, False)
                    mfma16(AX, AUX + SO + 4 * i, XSF + SO + 4 * i, False)
                work.append(two2)
            pend = []
            work += stat_final()
        if c == 2:
            work.append(lambda: a(tag_final))
        if c < 6:
            n_ = -(-len(rest) // (6 - c))
            work += [lambda t=t: a(t) for t in rest[:n_]]
            rest = rest[n_:]
        gaps = max(1, len(dm) - 1)
        for k, f in enumerate(dm):
            f()
            if k < gaps:
                n_ = -(-len(work) // (gaps - k))
                for g_ in work[:n_]:
                    g_()
                work = work[n_:]
        assert not work
        if c >= 6:
            a("s_waitcnt lgkmcnt(0)")
    a("; ---- Q projection")
    a("s_setprio %d" % cfg.get("qprio", 0))
    MKq, RKq, aQ, cQ = 230, 234, 210, 226
    QW = lambda n: 198 + 4 * (n % 3)
    XSETS = (150, 166, 182, 32, 48)
    NXS = len(XSETS)
    QX = lambda n: XSETS[n % NXS] if n < 2 * NXS else XSETS[(n - 2 * NXS) % 3]
    def qx_reads(n):
        c, ks = n >> 1, n & 1
        return [lambda tt=tt: a("ds_read_b128 %s, v%d offset:%d" % (vr(QX(n) + 4 * tt, 4), vXa0 if ks == 0 else vXa1, L_X + c * 8192 + tt * 2048), tag="qx%d" % n) for tt in range(4)]
    def qw_read(n):
        c, ks = n >> 1, n & 1
        ad, off = ring_addr(slot(8 + (c >> 1)) + (c & 1) * 8192 + ks * 4096)
        return lambda: tr_read(QW(n), ad, off, "qw%d" % n)
    for n in range(NXS):
        for f in qx_reads(n):
            f()
    for i in range(4):
        a("v_mul_f32 v%d, %s, v%d" % (RKq + i, f32(0.25 * LOG2E), RKq + i))
    a("s_waitcnt lgkmcnt(0)")
    a.wait(vm=("w8", "w9"))
    a("s_barrier")
    stamp("B8")
    qw_read(0)()
    qw_read(1)()
    xq = [(n, f) for n in range(NXS, 16) for f in qx_reads(n)]
    zq = list(range(0, 32, 2))
    for n in range(16):
        if n == 6:
            stamp("preB9")
            a.wait(vm=("w10", "w11"))
            a("s_barrier")
            stamp("B9")
        a.wait(lg=("qw%d" % n, "qx%d" % n))
        mf = [lambda: mfma16(cQ, QW(n), ONES, n == 0)]
        mf += [lambda tt=tt: mfma16(aQ + 4 * tt, QW(n), QX(n) + 4 * tt, n == 0) for tt in range(4)]
        rd = [qw_read(n + 2)] if n + 2 < 16 else []
        def free(m):
            prev = max(k for k in range(m) if QX(k) == QX(m))
            return prev < n
        k = 0
        while xq and free(xq[0][0]) and (k < 3 or xq[0][0] <= n + 2) and k < 4:
            rd.append(xq.pop(0)[1]); k += 1
        interleave(mf, rd)
        if n >= 2 * NXS:
            for i in zq[:3]:
                a("v_mov_b64 %s, 0" % vr(OA + i, 2))
            zq = zq[3:]
    assert not xq and not zq
    stamp("qmf")
    def inbox_kv():
        a("ds_read_b128 %s, v%d" % (vr(KVB(0), 4), vIn))
        a("s_mov_b64 exec, %s" % sVM)
        a("ds_read_b128 %s, v%d offset:8192\nds_read_b128 %s, v%d offset:8448" % (vr(KVB(0) + 4, 4), vIn, vr(KVB(0) + 8, 4), vIn))
        a("s_mov_b64 exec, -1")
    FAST = cfg.get("faststart", 0)
    PRIO = dict((int(k), v_) for k, v_ in cfg.get("prio", {"0": [3, 2], "25": [1, None], "31": [None, 0]}).items())
    PRIO0 = PRIO.pop(0)
    if FAST:
        inbox_kv()
    a("v_xor_b32 v%d, 4096, v%d" % (vTmp, vIn))
    a("s_lshl_b32 %s, %s, 2\ns_add_u32 %s, %s, %d\nv_mov_b32 v%d, %s" % (sT0, sHH, sT0, sT0, L_SEL + 64, vTmp + 1, sT0))
    norm_tok(aQ, cQ, MKq, RKq, range(4))
    pack(QA, aQ)
    pack(QB, aQ + 8)
    swap(QA)
    swap(QB)
    a("ds_write_b128 v%d, %s\nds_write_b128 v%d, %s offset:8192" % (vTmp, vr(QB, 4), vTmp, vr(QA, 4)))
    a("s_waitcnt lgkmcnt(0)")
    stamp("qend")
    if FAST:
        a("v_mfma_f32_32x32x16_bf16 %s, %s, %s, 0" % (vr(SA, 16), vr(KVB(0), 4), vr(QA, 4)))
    a("s_barrier")
    stamp("B10")
    a("ds_read_b32 v%d, v%d" % (vTmp + 1, vTmp + 1), tag="rdy")
    if FAST:
        a("s_setprio %d\ns_nop 7\ns_branch L_att2" % PRIO0[1])
    else:
        inbox_kv()
        a("s_setprio %d" % PRIO0[1])
        a.wait(lg="rdy")
        a("v_readfirstlane_b32 %s, v%d\ns_and_b32 %s, %s, 0xf\ns_cbranch_scc1 L_att" % (sMask, vTmp + 1, sT0, sMask))
        early_loads()
        a("s_branch L_att")

    a.vm, a.lg = [], []
    a.label("L_compute")
    if cfg.get("split_ka", 1):
        ptr_loads(P_REST)
    init_phase1()
    sFo, sHo = sKx, sKw
    crest = init_rest(238) + [ffn_unit]
    crest.append("s_lshl_b32 %s, %s, 7\ns_add_u32 %s, %s, %s\ns_lshl_b32 %s, %s, 2\ns_add_u32 %s, %s, %s" % (sFo, sTB, sFo, sFo, sFl, sHo, sTB, sHo, sHo, sHint))
    crest = [t for piece in crest for t in piece.split("\n")]
    NC = cfg.get("ncearly", 100)
    if cfg.get("pfq", 0):
        k0 = cfg.get("pfq_at", 0)
        for t in crest[:k0]:
            a(t)
        a("s_waitcnt lgkmcnt(0)")
        a("s_mov_b32 s14, %d\ns_mov_b32 s15, 0x20000" % (512 * 3072))
        a("s_lshl_b32 %s, %s, 2\ns_add_u32 %s, %s, %s\ns_mul_i32 %s, %s, %d\ns_lshl_b32 %s, %s, 7\ns_add_u32 %s, %s, %s"
          % (sT0, sTB, sT0, sT0, sHH, sT0, sT0, 4 * 3072, sT1, sHG, sT0, sT0, sT1))
        for i in range(8):
            a("s_buffer_load_dword %s, %s, %s offset:%d" % (sCnt, SWQ, sT0, (i >> 1) * 3072 + (i & 1) * 64))
        crest, NC = crest[k0:], NC - k0
    for t in crest[:NC]:
        a(t)
    crest = crest[NC:]
    assert len(crest) >= 8
    a("s_waitcnt lgkmcnt(0)")
    first_stamp()
    ws_window()
    CPER = cfg.get("cper", 1)
    FR = lambda n: (150, 174, 32)[n % 3]
    aK, aV, cK, cV = 198, 214, 230, 234
    MK, RK = 64, 68
    def kv_reads(n):
        c, ks = n >> 1, n & 1
        def w_(m):
            ad, off = ring_addr(slot(c) + m * 8192 + ks * 4096)
            return lambda: tr_read(FR(n) + 4 * m, ad, off, "f%dw%d" % (n, m))
        def x_(tt):
            return lambda: a("ds_read_b128 %s, v%d offset:%d" % (vr(FR(n) + 8 + 4 * tt, 4), vXa0 if ks == 0 else vXa1, L_X + c * 8192 + tt * 2048), tag="f%dx%d" % (n, tt))
        return [w_(0), x_(0), w_(1), x_(1), x_(2), x_(3)]
    def kv_mfmas(n):
        f = FR(n)
        def g(d, A, B, tags):
            def h():
                a.wait(lg=["f%d%s" % (n, t) for t in tags])
                mfma16(d, A, B, n == 0)
                for t in crest[:CPER if (n & 1) else 2 * CPER]:
                    a(t)
                del crest[:CPER if (n & 1) else 2 * CPER]
            return h
        out = [g(cK, f, ONES, ["w0"]), g(aK, f, f + 8, ["x0"]), g(cV, ONES, f + 4, ["w1"]), g(aV, f + 8, f + 4, [])]
        for tt in range(1, 4):
            out += [g(aK + 4 * tt, f, f + 8 + 4 * tt, ["x%d" % tt]), g(aV + 4 * tt, f + 8 + 4 * tt, f + 4, [])]
        return out
    for c in range(8):
        a("; ---- K/V chunk %d" % c)
        if "only" in cfg:
            stamp("pre%d" % c)
        a("s_barrier")
        if c in (0, 7) or "only" in cfg:
            stamp("chunk%d" % c)
        rd = kv_reads(2 * c) + kv_reads(2 * c + 1)
        if cfg.get("x_nord") and c < 7:
            rd = []
        if cfg.get("x_nomf") and c < 7:
            for f in rd:
                f()
            for t in crest:
                a(t)
            del crest[:]
            a("s_waitcnt lgkmcnt(0)")
            continue
        npre = cfg.get("npre", 3)
        for f in rd[:npre]:
            f()
        interleave((kv_mfmas(2 * c - 1) if c > 0 else []), rd[npre:])
        if c == 7:
            read_tok_stats(MK, RK, vTmp, "mk")
        for f in kv_mfmas(2 * c):
            f()
        if c < 7:
            a("s_waitcnt lgkmcnt(0)")
    assert not crest, len(crest)
    MV, RV = 174, 32
    a("v_lshrrev_b32 v%d, 4, v0\nv_lshlrev_b32 v%d, 4, v%d\nv_add_u32 v%d, %d, v%d" % (vTmp, vTmp, vTmp, vTmp, L_M, vTmp))
    a("s_waitcnt lgkmcnt(0)")
    mvr = [lambda tt=tt: a("ds_read_b128 %s, v%d offset:%d" % (vr(MV + 4 * tt, 4), vTmp, tt * 64), tag="mv") for tt in range(4)]
    mvr += [lambda tt=tt: a("ds_read_b128 %s, v%d offset:%d" % (vr(RV + 4 * tt, 4), vTmp, 256 + tt * 64), tag="mv") for tt in range(4)]
    order = kv_mfmas(15)
    order = [order[i] for i in (0, 1, 4, 6, 8, 2, 3, 5, 7, 9)]
    interleave(order, mvr)
    B8AT = cfg.get("b8at", 2)
    def b8(k):
        if B8AT == k:
            a("s_barrier")
            stamp("B8")
    b8(0)
    a("; ---- K/V epilogue")
    K0, K1 = KVB(0), KVB(1)
    VI = 190
    a("s_add_u32 %s, %s, 8192" % (sT0, sGrp))
    norm_tok(aK, cK, MK, RK, range(4))
    pack(K0, aK)
    pack(K1, aK + 8)
    swap(K0)
    swap(K1)
    a("buffer_store_dwordx4 %s, v%d, %s, %s offen %s" % (vr(K0, 4), vKV, SWS, sGrp, KSM), tag="kvst")
    a("buffer_store_dwordx4 %s, v%d, %s, %s offen %s" % (vr(K1, 4), vKV, SWS, sT0, KSM), tag="kvst")
    b8(1)
    a.wait(lg="mv")
    for i in range(0, 16, 2 if PK else 1):
        if PK:
            a("v_pk_fma_f32 %s, %s, %s, %s neg_lo:[1,0,0] neg_hi:[1,0,0]" % (vr(aV + i, 2), vr(MV + i, 2), vr(cV, 2), vr(aV + i, 2)))
        else:
            a("v_fma_f32 v%d, -v%d, v%d, v%d" % (aV + i, MV + i, cV, aV + i))
    for i in range(0, 16, 2 if PK else 1):
        if PK:
            a("v_pk_mul_f32 %s, %s, %s" % (vr(aV + i, 2), vr(RV + i, 2), vr(aV + i, 2)))
        else:
            a("v_mul_f32 v%d, v%d, v%d" % (aV + i, RV + i, aV + i))
    pack(VI, aV)
    pack(VI + 4, aV + 8)
    swap(VI)
    swap(VI + 4)
    a("buffer_store_dwordx4 %s, v%d, %s, %s offen offset:1024 %s" % (vr(VI, 4), vKV, SWS, sGrp, KSM), tag="kvst")
    a("buffer_store_dwordx4 %s, v%d, %s, %s offen offset:1024 %s" % (vr(VI + 4, 4), vKV, SWS, sT0, KSM), tag="kvst")
    if cfg.get("x_dbl"):
        for (r, so, off) in ((K0, sGrp, 0), (K1, sT0, 0), (VI, sGrp, 1024), (VI + 4, sT0, 1024)):
            a("buffer_store_dwordx4 %s, v%d, %s, %s offen offset:%d sc1" % (vr(r, 4), vKV, SWS, so, off), tag="kv2")
    stamp("kvstore")
    a(tag_load)
    b8(2)
    a("v_xor_b32 v%d, 4096, v%d\nv_add_u32 v%d, %d, v%d" % (vTmp, vIn, vTmp + 1, L_SEL, vL4))
    a("ds_write_b128 v%d, %s\nds_write_b128 v%d, %s offset:8192" % (vTmp, vr(K1, 4), vTmp, vr(VI + 4, 4)))
    a("ds_write_b32 v%d, v%d\nds_write_b32 v%d, v%d offset:%d\nds_write_b32 v%d, v%d offset:%d"
      % (vTmp + 1, vZ, vTmp + 1, vZ, L_ZERO - L_SEL, vTmp + 1, vZ, L_ZERO - L_SEL + 256))
    for i in range(4):
        a("v_mov_b32 v%d, v%d" % (K0 + 4 + i, VI + i))
    for i in range(0, 32, 2):
        a("v_mov_b64 %s, 0" % vr(OA + i, 2))
    for i in range(4):
        a("v_permlane16_swap_b32 v%d, v%d" % (K0 + 4 + i, K0 + 8 + i))
    a("s_waitcnt lgkmcnt(0)")
    a(tag_final)
    a("s_and_b32 %s, %s, 7\ns_xor_b32 %s, %s, %s\ns_xor_b32 %s, %s, 1\ns_or_b32 %s, %s, %s" % (sE, sTB, sE, sE, sHG, sT1, sW, sE, sE, sT1))
    a("s_cbranch_scc0 L_cand")
    a("s_barrier")
    a.label("L_cand_ret")
    a.wait(vm="kvst")
    stamp("kvack")
    a("s_mov_b64 exec, 1")
    a("buffer_store_dword v%d, v%d, %s, %s offen" % (vNn, vZ, SWS, sHo), optional=True)
    a("s_mov_b64 exec, -1")
    hint_load = lambda r: "buffer_load_dword v%d, v%d, %s, %s offen sc1" % (r, vHi, SWS, sHint)
    flag_load = lambda r: "buffer_load_dword v%d, v%d, %s, %s offen sc1" % (r, vFk, SWS, sFl)
    flag_mask = lambda r: ["v_cmp_ne_u32 vcc, %s, v%d" % (sN, r), "s_and_b32 %s, %s, 28" % (sT1, sTB),
                           "s_lshr_b64 vcc, vcc, %s" % sT1, "s_mov_b32 %s, vcc_lo" % sMask]
    a("s_mov_b32 %s, %d" % (sCnt, cfg.get("nhint", 2)))
    a.label("L_hint")
    a(hint_load(vTmp + 1), optional=True)
    a("s_waitcnt vmcnt(0)")
    for t in flag_mask(vTmp + 1):
        a(t)
    a("s_and_b32 %s, %s, 0xf\ns_cbranch_scc0 L_hint_ok" % (sT0, sMask))
    a("s_sub_u32 %s, %s, 1\ns_cmp_lg_u32 %s, 0\ns_cbranch_scc1 L_hint" % (sCnt, sCnt, sCnt))
    a.label("L_hint_ok")
    stamp("hint")
    a("s_lshl_b32 %s, %s, 2\ns_add_u32 %s, %s, %d" % (sT0, sHH, sT0, sT0, L_SEL + 64))
    a("s_mov_b64 exec, 1")
    a("buffer_store_dword v%d, v%d, %s, %s offen sc1" % (vNn, vZ, SWS, sFo), optional=True)
    a("v_mov_b32 v%d, %s\nv_mov_b32 v%d, %s" % (vTmp, sT0, vTmp + 1, sMask))
    a("ds_write_b32 v%d, v%d" % (vTmp, vTmp + 1))
    a("s_mov_b64 exec, -1")
    a("s_waitcnt lgkmcnt(0)")
    a("s_and_b32 %s, %s, 0xf\ns_cbranch_scc1 L_noearly" % (sT0, sMask))
    early_loads()
    a.label("L_noearly")
    a("s_cmp_eq_u32 %s, 0\ns_cbranch_scc1 L_cand2" % sE)
    a.label("L_cand2_ret")
    a("s_setprio %d" % PRIO0[0])
    a("s_barrier")
    stamp("B10")
    a("ds_read_b128 %s, v%d\nds_read_b128 %s, v%d offset:8192" % (vr(QA, 4), vIn, vr(QB, 4), vIn))

    a.lg = []
    assert a.vm == ["t%d" % t for t in EARLY for _ in range(3)], a.vm
    a.label("L_att")
    for _ in range(cfg.get("x_sleep", 0)):
        a("s_sleep 16")

    def qk(S, b, Q):
        a("v_mfma_f32_32x32x16_bf16 %s, %s, %s, 0" % (vr(S, 16), vr(KVB(b), 4), vr(Q, 4)))

    def pv(O, b, half, S):
        a("v_smfmac_f32_32x32x32_bf16 %s, %s, %s, v%d" % (vr(O, 16), vr(KVB(b) + 4 + 4 * half, 4), vr(S + 8 * half, 8), vIdx))

    def ex(S, i0, i1):
        for i in range(i0, i1):
            a("v_exp_f32 v%d, v%d" % (S + i, S + i))

    def wo_dma(i):
        if cfg.get("worot", 0):
            c2, kc = i & 1, i >> 1
            if c2 == 0:
                a("s_add_u32 %s, %s, %d\ns_and_b32 %s, %s, 7" % (sKw, sQ3, kc, sKw, sKw))
                a("s_lshl_b32 %s, %s, 13\ns_add_u32 %s, %s, %s\ns_lshl_b32 %s, %s, 16\ns_mov_b32 m0, %s" % (sRot, sKw, sRot, sRot, sM0, sKw, sKw, sRot))
            else:
                a("s_add_u32 m0, %s, %d" % (sRot, 65536 - 128))
            a("buffer_load_dwordx4 v%d, %s, %s offen offset:%d lds" % (vWoD, SWO, sKw, 128 * c2), tag="wo")
            return
        c2, kc = i >> 3, i & 7
        a("s_add_u32 m0, %s, %d\ns_mov_b32 %s, %d" % (sM0, i * 8192, sT0, kc * 65536 + c2 * 128))
        a("buffer_load_dwordx4 v%d, %s, %s offen lds" % (vWoD, SWO, sT0), tag="wo")

    POLLID = {"L_latewaitp": 4, "L_ehwaitp": 6, "L_owaitp": 5}
    def poll(lbl, load_lines, check_lines, sleep=2, wait="vmcnt(0) lgkmcnt(0)", limit=SPIN_MAX):
        a("s_mov_b32 %s, %d" % (sCnt, limit))
        a.label(lbl)
        if callable(load_lines):
            load_lines()
        else:
            for t in load_lines:
                a(t, optional=True)
        if STAMP and lbl in POLLID:
            a("s_add_u32 s101, s101, %d" % (1 << (4 * POLLID[lbl])))
        a("s_waitcnt " + wait)
        for t in check_lines:
            a(t)
        a("s_cbranch_vccz %s_ok" % lbl)
        a("s_sub_u32 %s, %s, 1\ns_cmp_eq_u32 %s, 0\ns_cbranch_scc1 %s_ok" % (sCnt, sCnt, sCnt, lbl))
        a("s_sleep %d\ns_branch %s" % (sleep, lbl))
        a.label(lbl + "_ok")
        a("s_nop 1")

    T_WO = cfg.get("t_wo", 9)
    T_RD = cfg.get("t_rd", 30)
    T_Y2 = cfg.get("t_y2", 31)
    YB = 116
    sOwA, sOwB = "s[64:65]", "s[66:67]"
    T_CLR = cfg.get("t_clr", 12)
    T_XT = cfg.get("t_xt", 28)
    T_EH = cfg.get("t_eh", [32, 0])
    T_FLAG = cfg.get("t_flag", [[1, 2]])
    NT = 32
    sched = {}
    todo = [t for t in range(1, NT) if t not in EARLY]
    for s in range(NT):
        lim = min(NT - 1, s + NB - 1, 3 if s < T_FLAG[0][1] else NT)
        la, lb_ = [], []
        if s > 0 and todo and todo[0] <= lim:
            la.append(todo.pop(0))
        if s > 0 and todo and todo[0] <= lim and s in cfg.get("ramp", [2]):
            lb_.append(todo.pop(0))
        sched[s] = (la, lb_)
    assert not todo
    def one_lane_store(r, so, mod, **kw):
        a("s_mov_b64 exec, 1")
        a("buffer_store_dword v%d, v%d, %s, %s offen %s" % (r, vZ, SWS, so, mod), **kw)
        a("s_mov_b64 exec, -1")
    EH1, EHW = cfg.get("eh1", 1), cfg.get("ehw", "hg")
    EHW = sHG if EHW == "hg" else str(EHW)
    def eh_addr():
        if EH1:
            a("s_lshl_b32 %s, %s, 5\ns_add_u32 %s, %s, %s\ns_lshl_b32 %s, %s, 9\ns_add_u32 %s, %s, %d" % (sT0, sHG, sT0, sT0, sTB, sT0, sT0, sT0, sT0, EH_OFF))
            return
        a("s_lshl_b32 %s, %s, 5\ns_add_u32 %s, %s, %s\ns_lshl_b32 %s, %s, 2\ns_add_u32 %s, %s, %s\ns_lshl_b32 %s, %s, 7\ns_add_u32 %s, %s, %d"
          % (sT0, sHG, sT0, sT0, sTB, sT0, sT0, sT0, sT0, sHH, sT0, sT0, sT0, sT0, EH_OFF))
    guard_reads = ["ds_read_b32 v%d, v%d offset:32" % (vTmp + 1, vTmp), "ds_read_b64 %s, v%d" % (vr(T, 2), vTmp)]
    late_loads = ["s_mov_b32 %s, %d" % (sT0, ST_OFF), "v_lshlrev_b32 v%d, 3, v%d" % (CK + 2, vTok),
                  "buffer_load_dwordx2 %s, v%d, %s, %s offen sc1" % (vr(CK + 2, 2), CK + 2, SWS, sT0),
                  "buffer_load_dword v%d, v%d, %s, %s offen sc1" % (CK, vSt, SWS, sCLc)]
    late_check = ["v_cmp_ne_u32 vcc, %s, v%d" % (sN, CK), "v_cmp_ne_u32 %s, %s, v%d" % (sP0, sN, CK + 3), "s_or_b64 vcc, vcc, %s" % sP0]

    ROLES = {}
    saved = {}

    def emit_tile(s, sfx="", hooks=None, mid=None):
        b = s % NB
        a("; ---- key tile %d%s" % (s, sfx))
        if not sfx:
            for (st, wv, lbl, en) in ROLE_LIST:
                if en == s:
                    a.label(lbl + "_ret")
            for (st, wv, lbl, en) in ROLE_LIST:
                if st == s:
                    saved[lbl] = (list(a.vm), list(a.lg))
                    if wv == 1:
                        a("s_and_b32 %s, %s, 5\ns_cmp_eq_u32 %s, 1\ns_cbranch_scc1 %s" % (sT0, sW, sT0, lbl))
                    else:
                        a("s_cmp_eq_u32 %s, %d\ns_cbranch_scc1 %s" % (sW, wv, lbl))
                    a.label(lbl + "_skip")
        if hooks and s in hooks:
            hooks[s]()
        if s in PRIO:
            p = PRIO[s]
            if isinstance(p, int):
                a("s_setprio %d" % p)
            else:
                for role in range(2):
                    if p[role] is not None:
                        a("s_cmp_lg_u32 %s, %d\ns_cbranch_scc1 L_prio%d_%d%s\ns_setprio %d" % (sTH, role, s, role, sfx, p[role]))
                        a.label("L_prio%d_%d%s" % (s, role, sfx))
        if s in (1, 8) or "only" in cfg:
            stamp("tile%d" % s)
        if s in [x[1] for x in T_FLAG]:
            a.wait(vm="fl")
            for t in flag_mask(vTmp):
                a(t)
        if s == T_WO + 18:
            a.wait(vm="wo")
            a("v_mov_b32 v%d, %d\nv_mov_b32 v%d, 1\ns_mov_b64 exec, 1" % (vTmp, L_SEL, vTmp + 1))
            a("ds_add_u32 v%d, v%d offset:32" % (vTmp, vTmp + 1), optional=True)
            a("s_mov_b64 exec, -1")
        if s == T_RD:
            a("s_waitcnt lgkmcnt(0)")
            a("v_cmp_gt_u32 vcc, 11, v%d\ns_cbranch_vccnz L_guardwait" % (vTmp + 1))
            a.label("L_guardwait_ret")
            a("v_cmp_eq_u32 %s, v%d, v%d\nv_cmp_eq_u32 %s, v%d, v%d" % (sOwA, vTok, T, sOwB, vTok, T + 1))
            a("s_or_b64 vcc, %s, %s\ns_cbranch_scc1 L_y1" % (sOwA, sOwB))
            a.label("L_y1_ret")
        if s == cfg.get("t_chk", 31):
            a.wait(vm="xt")
            for t in late_check:
                a(t)
            a("s_cbranch_vccnz L_latewait")
            a.label("L_latewait_ret")
        wor = [lambda k=k: tr_read(WO + 4 * k, vWoA, (k >> 1) * 8192 + (k & 1) * 4096, "wo0", second=1024) for k in range(16)]
        nper = -(-16 // (cfg.get("t_rde", NT) - T_RD))
        wor = wor[(s - T_RD) * nper:(s - T_RD + 1) * nper] if s >= T_RD and not cfg.get("x_noword") else []
        def wo_some(n):
            for f in wor[:n]:
                f()
            del wor[:n]
        ex(SA, 0, 2)
        if s > 0:
            pv(OB, (s - 1) % NB, 1, SB)
        for t in sched[s][0]:
            if not (cfg.get("x_nokv") and t > 5):
                kv_load(t, sfx=sfx)
        if s in [x[0] for x in T_FLAG]:
            a(hint_load(vTmp), tag="fl")
        WS_ = -(-nper // 6)
        wo_some(WS_)
        ex(SA, 2, 5)
        if s > 0 or FAST:
            qk(SB, b, QB)
        wo_some(WS_)
        if T_WO <= s < T_WO + 16 and not cfg.get("nowo"):
            wo_dma(s - T_WO)
        if s == 0 and FAST:
            a("s_cmp_lg_u32 %s, 0\ns_cbranch_scc1 L_ldstart" % sTH)
            a.label("L_ldstart_ret")
        if mid and s in mid:
            mid[s]()
        if s == T_CLR:
            a("buffer_store_dwordx4 %s, v1, %s, %s offen sc1" % (vr(XT, 4), SWS, sOP), tag="clr")
            if EH1:
                a("s_cmp_lg_u32 %s, %s\ns_cbranch_scc1 L_noehc%s" % (sW, EHW, sfx))
            else:
                a("s_cmp_eq_u32 %s, 0\ns_cbranch_scc1 L_noehc%s" % (sTH, sfx))
            eh_addr()
            one_lane_store(XT, sT0, "sc1", optional=True)
            a.label("L_noehc%s" % sfx)
        if s == T_CLR + 3:
            a.wait(vm="clr")
            one_lane_store(vNn, sCLp, "sc1", tag="clf")
        if s == T_XT:
            a("buffer_load_dwordx4 %s, v%d, %s, 0 offen" % (vr(XT, 4), vOut, SX), tag="xt")
            for t in late_loads:
                a(t, tag="xt")
        if s == cfg.get("t_ow", -1):
            if cfg.get("owkind") == "load":
                a("buffer_load_dword v%d, v%d, %s, 0 offen" % (T + 9, vOut, SOUT), tag="ow")
            elif cfg.get("owkind") == "one":
                a("s_mov_b64 exec, 1")
                a("buffer_store_dword v%d, v%d, %s, 0 offen" % (vZ, vOut, SOUT), tag="ow")
                a("s_mov_b64 exec, -1")
            else:
                a("buffer_store_dwordx4 %s, v%d, %s, 0 offen" % (vr(QA, 4), vOut, SOUT), tag="ow")
        def end_hint(pos):
            if [s, pos] == list(T_EH):
                a("s_cmp_eq_u32 %s, 0\ns_cbranch_scc1 L_noeh" % sTH)
                eh_addr()
                one_lane_store(vNn, sT0, "sc1", optional=True)
                a.label("L_noeh")
        end_hint(0)
        ex(SA, 5, 10)
        pv(OA, b, 0, SA)
        wo_some(WS_)
        ex(SA, 10, 16)
        ex(SB, 0, 2)
        pv(OA, b, 1, SA)
        if s == 0:
            a("s_and_b32 %s, %s, 0xf\ns_cbranch_scc1 L_slowstart" % (sT0, sMask))
            a.label("L_slowstart_ret")
        def next_qk():
            a.wait(vm="t%d" % (s + 1))
            qk(SA, (s + 1) % NB, QA)
        if s == T_RD - 1:
            for t in guard_reads:
                a(t, tag="gd")
        wo_some(WS_)
        end_hint(1)
        if s == T_Y2:
            a("s_or_b64 vcc, %s, %s\ns_cbranch_scc1 L_y2" % (sOwA, sOwB))
            a.label("L_y2_ret")
        if s == NT - 1:
            if T_EH[0] == 32:
                eh_addr()
                a("s_mov_b32 %s, %s" % (sKx, sT0))
            a("s_mov_b32 %s, %s\ns_mov_b32 %s, %s" % (sT2, f32(2.0 ** -30), sT3, f32(2.0 ** 60)))
        ex(SB, 2, 5)
        if 0 < s < NT - 1:
            next_qk()
        wo_some(WS_)
        for t in sched[s][1]:
            kv_load(t, sfx=sfx)
        ex(SB, 5, 10)
        pv(OB, b, 0, SB)
        end_hint(2)
        wo_some(16)
        if s == NT - 1:
            ex(SB, 10, 13)
            a("ds_write_b128 v%d, %s\nds_write_b128 v%d, %s offset:1024\nds_write_b32 v%d, v%d" % (vSw, vr(OA, 4), vSw, vr(OA + 4, 4), vLw, OA + 8))
            ex(SB, 13, 16)
        else:
            ex(SB, 10, 16)
        if s == 0:
            next_qk()

    R0, R1, R2, R3 = cfg.get("roles", [[0, 3, 6], [1, 3, 8, 11, 14], [2, 12, 22, 25], [0, 17, 18, 21]])
    ROLE_LIST = [(r[1], r[0], "L_st%d" % i, r[-1]) for i, r in enumerate((R0, R1, R2, R3))]
    if cfg.get("x_nor0"):
        ROLE_LIST[0] = (R0[1], 9, "L_st0", R0[-1])
    a("s_and_b32 %s, %s, 0xf\ns_cbranch_scc1 L_hint2" % (sT0, sMask))
    a.label("L_hint2_ret")
    a("s_waitcnt lgkmcnt(0)")
    qk(SA, 0, QA)
    if FAST:
        a("s_nop 7\ns_nop 3")
    else:
        qk(SB, 0, QB)
    a.label("L_att2")
    for s in range(NT):
        emit_tile(s)
    pv(OB, (NT - 1) % NB, 1, SB)
    stamp("loopend")

    def tail_hint(pos):
        if [32, pos] == list(T_EH):
            if EH1:
                a("s_cmp_lg_u32 %s, %s\ns_cbranch_scc1 L_noeh" % (sW, EHW))
            else:
                a("s_cmp_eq_u32 %s, 0\ns_cbranch_scc1 L_noeh" % sTH)
            one_lane_store(vNn, sKx, "sc1", optional=True)
            a.label("L_noeh")
    if not EH1:
        a("v_and_b32 v%d, 0x180, v%d" % (vFk, vFk))
    a("s_setprio 2")
    a("s_waitcnt lgkmcnt(0)")
    a("s_barrier")
    stamp("T1")
    a("ds_read_b32 v%d, v%d" % (SA + 8, vLr), tag="pl")
    a("ds_read_b128 %s, v%d\nds_read_b128 %s, v%d offset:1024" % (vr(SA, 4), vSr, vr(SA + 4, 4), vSr), tag="pp")
    GS, UP, XE, G, GT = 84, 88, 96, 104, 112
    eh_load = "buffer_load_dword v%d, v%d, %s, %s offen sc1" % (CK, vZ if EH1 else vFk, SWS, sEHc)
    if cfg.get("ehfirst"):
        tail_hint(0)
    a(eh_load, tag="eh")
    if not cfg.get("ehfirst"):
        tail_hint(0)
    a("s_nop 2")
    a.wait(lg="pl")
    a("v_add_f32 v%d, v%d, v%d" % (OB + 8, OB + 8, SA + 8))
    a("v_cmp_nle_f32 vcc, %s, v%d\nv_cmp_nge_f32 %s, %s, v%d" % (sT2, OB + 8, sP0, sT3, OB + 8))
    a("v_rcp_f32 v%d, v%d" % (OB + 8, OB + 8))
    a("s_or_b64 vcc, vcc, %s" % sP0)
    a.wait(lg="pp")
    for i in range(0, 8, 2):
        a("v_pk_add_f32 %s, %s, %s" % (vr(OB + i, 2), vr(OB + i, 2), vr(SA + i, 2)))
    if cfg.get("force_fallback"):
        a("s_branch L_fallback")
    else:
        a("s_cbranch_vccnz L_fallback")
    a.label("L_fallback_ret")
    for i in range(0, 8, 2):
        a("v_pk_mul_f32 %s, %s, %s op_sel_hi:[0,1]" % (vr(OB + i, 2), vr(OB + 8, 2), vr(OB + i, 2)))
    OF = OA
    pack(OF, OB)
    for i in range(4):
        a("v_min_u32 v%d, -2, v%d" % (OF + i, OF + i))
    a("buffer_store_dwordx4 %s, v1, %s, %s offen sc1" % (vr(OF, 4), SWS, sOP), tag="ost")
    tail_hint(1)
    stamp("ostore")
    a("s_setprio 0")

    def unpack(dst, src, n):
        return ["v_lshlrev_b32 v%d, 16, v%d\nv_and_b32 v%d, 0xffff0000, v%d" % (dst + 2 * i, src + i, dst + 2 * i + 1, src + i) for i in range(n)]

    def repack_l(buf, tmp, n):
        return ["v_cvt_pk_bf16_f32 v%d, v%d, v%d" % (tmp + i, buf + 2 * i, buf + 2 * i + 1) for i in range(n)] + unpack(buf, tmp, n)

    def repack(buf, tmp, n):
        for t in repack_l(buf, tmp, n):
            a(t)

    g1 = ["v_and_b32 v%d, 0xffff0000, v%d\nv_lshlrev_b32 v%d, 16, v%d\nv_rcp_f32 v%d, v%d" % (GS + 1, CK + 2, GS, CK + 2, GS + 1, GS + 1)]
    g1 += unpack(XE, XT, 4)
    g1 += ["v_pk_add_f32 %s, %s, %s op_sel_hi:[1,0] neg_lo:[0,1] neg_hi:[0,1]" % (vr(G + i, 2), vr(XE + i, 2), vr(GS, 2)) for i in range(0, 8, 2)]
    if cfg.get("gate_round", 2) >= 2:
        g1 += repack_l(G, GT, 4)
    g1 += ["v_pk_mul_f32 %s, %s, %s op_sel:[0,1]" % (vr(G + i, 2), vr(G + i, 2), vr(GS, 2)) for i in range(0, 8, 2)]
    if cfg.get("gate_round", 2) >= 1:
        g1 += repack_l(G, GT, 4)
    for t in g1:
        a(t)
    a("s_mov_b32 s58, %s\ns_mov_b32 s59, s58" % f32(-LOG2E))
    g2 = ["v_pk_add_f32 %s, %s, %s" % (vr(G + i, 2), vr(G + i, 2), vr(UP + i, 2)) for i in range(0, 8, 2)]
    g2 += ["v_pk_mul_f32 %s, s[58:59], %s" % (vr(UP + i, 2), vr(G + i, 2)) for i in range(0, 8, 2)]
    g2 += ["v_exp_f32 v%d, v%d" % (UP + i, UP + i) for i in range(8)]
    g2 += ["v_pk_add_f32 %s, %s, 1.0 op_sel_hi:[1,0]" % (vr(UP + i, 2), vr(UP + i, 2)) for i in range(0, 8, 2)]
    g2 += ["v_rcp_f32 v%d, v%d" % (UP + i, UP + i) for i in range(8)]
    g2 += ["v_pk_mul_f32 %s, %s, %s" % (vr(G + i, 2), vr(G + i, 2), vr(UP + i, 2)) for i in range(0, 8, 2)]
    if cfg.get("gate_round", 2) >= 2:
        g2 += repack_l(G, GT, 4)
    OL, OCk = SA, SB
    loads = ["buffer_load_dwordx4 %s, v1, %s, %s offen offset:%d sc1" % (vr(OL + 4 * i, 4), SWS, sOC, 1024 * i) for i in range(4)]
    def chk1(i):
        return ["v_max3_u32 v%d, v%d, v%d, v%d" % (OCk, OL + 4 * i, OL + 4 * i + 1, OCk if i else OL),
                "v_max3_u32 v%d, v%d, v%d, v%d" % (OCk, OL + 4 * i + 2, OL + 4 * i + 3, OCk)]
    chk = chk1(0) + chk1(1) + chk1(2) + chk1(3) + ["v_cmp_eq_u32 vcc, -1, v%d" % OCk]
    o_write = lambda i: "ds_write_b128 v%d, %s offset:%d" % (vOw, vr(OL + 4 * i, 4), 1024 * i)
    if cfg.get("ack"):
        a.wait(vm="ost")
    if not cfg.get("noeh"):
        a.wait(vm="eh")
        a("v_cmp_ne_u32 vcc, %s, v%d\ns_cbranch_vccnz L_ehwait" % (sN, CK))
        a.label("L_ehwait_ret")
    stamp("oack")
    for i, t in enumerate(loads):
        a(t, tag="ol%d" % i)
    a("s_or_b64 vcc, %s, %s\ns_cbranch_scc1 L_y3" % (sOwA, sOwB))
    a.label("L_y3_ret")
    a("v_mov_b32 v%d, %d\nv_mov_b32 v%d, %d\nv_mov_b32 v%d, %d" % (GT, L_ZERO, GT + 1, L_UPD, GT + 2, L_UPD + 512))
    a("v_cndmask_b32 v%d, v%d, v%d, %s\nv_cndmask_b32 v%d, v%d, v%d, %s" % (GT, GT, GT + 2, sOwB, GT, GT, GT + 1, sOwA))
    a("v_add_u32 v%d, v%d, v%d" % (GT, GT, vUp))
    a("ds_read_b128 %s, v%d\nds_read_b128 %s, v%d offset:16" % (vr(UP, 4), GT, vr(UP + 4, 4), GT), tag="up")
    a.wait(lg="up")
    for t in g2:
        a(t)
    for i in range(4):
        a.wait(vm="ol%d" % i)
        a(o_write(i))
        for t in chk1(i):
            a(t)
    a(chk[-1])
    a("s_cbranch_vccnz L_owait")
    a.label("L_owait_ret")
    a("s_waitcnt lgkmcnt(0)")
    a("s_barrier")
    stamp("T3")
    ACC, RB, NRB = 116, 32, cfg.get("nrb", 8)
    seq = [(s, tt) for s in range(16) for tt in range(2)]
    def o_read(i):
        s, tt = seq[i]
        a("ds_read_b128 %s, v%d offset:%d" % (vr(RB + 4 * (i % NRB), 4), vOr, s * 2048 + tt * 256), tag="or%d" % i)
    STG = cfg.get("stagger", None)
    if STG is not None:
        a("s_cmp_eq_u32 %s, 0\ns_cbranch_scc1 L_stg0\ns_barrier" % sTH)
        a.label("L_stg0")
    for i in range(NRB - 2):
        o_read(i)
    for i, (s, tt) in enumerate(seq):
        if i + NRB - 2 < len(seq):
            o_read(i + NRB - 2)
        if i == STG:
            a("s_cbranch_scc0 L_stg1\ns_barrier")
            a.label("L_stg1")
        GW = cfg.get("gw", 2)
        if i % GW == 0 or i < 2:
            a.wait(lg="or%d" % (i if i < 2 else min(len(seq) - 1, i + GW - 1)))
        elif i < GW:
            a.wait(lg="or%d" % (GW - 1))
        mfma16(ACC + 4 * tt, WO + 4 * s, RB + 4 * (i % NRB), s == 0)
    a("s_or_b32 %s, s2, %s\ns_mov_b32 %s, %d" % (sT0, sW, sT1, NONCE_OFF))
    for r in range(4):
        a("v_permlane16_swap_b32 v%d, v%d" % (ACC + r, ACC + 4 + r))
    for i in range(0, 8, 2):
        a("v_pk_fma_f32 %s, %s, %s, %s" % (vr(ACC + i, 2), vr(ACC + i, 2), vr(G + i, 2), vr(XE + i, 2)))
    if cfg.get("x_err"):
        a("s_cmp_eq_u32 %s, 0\ns_cselect_b64 exec, 1, 0\nv_add_f32 v%d, %s, v%d\ns_mov_b64 exec, -1" % (sT0, ACC + 1, f32(cfg["x_err"]), ACC + 1))
    pack(GT, ACC)
    a("buffer_store_dwordx4 %s, v%d, %s, 0 offen %s" % (vr(GT, 4), vOut, SOUT, cfg.get("outmod", "")))
    a("s_cmp_lg_u32 %s, 0\ns_cbranch_scc1 L_nononce" % sT0)
    a("s_mov_b64 exec, 1")
    a("buffer_store_dword v%d, v%d, %s, %s offen sc1" % (vNn, vZ, SWS, sT1), optional=True)
    a.label("L_nononce")
    for _ in range(cfg.get("x_sleep9", 0)):
        a("s_sleep 16")
    if AMP:
        a("s_waitcnt vmcnt(0)")
        stamp("end")
        a("s_memrealtime s[94:95]\ns_waitcnt lgkmcnt(0)")
        if len(AMP) > 3 and AMP[3] == "avg":
            a("s_sub_u32 s98, s98, s96\nv_mov_b32 v20, s98\ns_cmp_eq_u32 %s, 0\ns_cselect_b64 exec, 1, 0" % sW)
            a("global_atomic_add v%d, v20, s[90:91] sc1\ns_waitcnt vmcnt(0)\ns_mov_b64 exec, 1" % vZ)
            a("s_sleep 127\ns_sleep 127")
            a("global_load_dword v20, v%d, s[90:91] sc1\ns_waitcnt vmcnt(0)\nv_readfirstlane_b32 s98, v20" % vZ)
            a("s_mul_i32 s98, s98, %d\ns_lshr_b32 s98, s98, 8\ns_add_u32 s98, s98, 1000\ns_min_u32 s98, s98, 100000" % AMP[2])
            a("s_or_b32 s99, s2, %s\ns_cselect_b32 s98, 0, s98" % sW)
        else:
            a("s_sub_u32 s98, s98, s96\ns_mul_i32 s98, s98, %d\ns_min_u32 s98, s98, 100000" % AMP[2])
            if len(AMP) > 3:
                a("s_cmp_eq_u32 s2, %d\ns_cselect_b32 s98, s98, 0" % AMP[3])
        a.label("L_amp")
        a("s_sleep 1\ns_memrealtime s[92:93]\ns_waitcnt lgkmcnt(0)\ns_sub_u32 s92, s92, s94\ns_cmp_lt_u32 s92, s98\ns_cbranch_scc1 L_amp")
    if STAMP:
        stamp("outst")
        a("s_waitcnt vmcnt(0)")
        stamp("end")
        a("s_memrealtime s[58:59]\ns_waitcnt lgkmcnt(0)")
        a("s_lshl_b32 %s, s2, 3\ns_add_u32 %s, %s, %s\ns_lshl_b32 %s, %s, 7\ns_add_u32 %s, %s, %d" % (sT0, sT0, sT0, sW, sT0, sT0, sT0, sT0, DBG_OFF))
        a("s_mov_b64 exec, 1")
        assert len(stamps) <= 16
        vals = ["s84", "s58"] + ["s%d" % (85 + i) for i in range(len(stamps))] + ["s101"]
        for i, sv in enumerate(vals):
            a("v_mov_b32 v20, %s" % sv)
            a("buffer_store_dword v20, v%d, %s, %s offen offset:%d" % (vZ, SWS, sT0, 4 * i))
        a("s_waitcnt vmcnt(0)")
    a("s_endpgm")

    def two_stage(lbl, first_load, hload, fload, check, pid=None):
        a("s_mov_b32 %s, 24" % sCnt)
        if first_load:
            a(hload, optional=True)
        a.label(lbl + "h")
        if STAMP and pid is not None:
            a("s_add_u32 s101, s101, %d" % (1 << pid))
        a("s_waitcnt vmcnt(0)")
        for t in check:
            a(t)
        a("s_cbranch_vccz %sdone" % lbl)
        a(hload, optional=True)
        a("s_sub_u32 %s, %s, 1\ns_cmp_lg_u32 %s, 0\ns_cbranch_scc1 %sh" % (sCnt, sCnt, sCnt, lbl))
        poll(lbl + "f", fload, check, sleep=4)
        a.label(lbl + "done")
    grp_check = lambda u: flag_mask(CK + 1) + ["s_and_b32 vcc_lo, vcc_lo, 0x%x" % (0xf << (4 * u)), "s_mov_b32 vcc_hi, 0", "s_mov_b64 vcc, vcc"]
    if FAST:
        a.label("L_ldstart")
        a("s_waitcnt lgkmcnt(0)")
        a("v_readfirstlane_b32 %s, v%d\ns_and_b32 %s, %s, 0xf\ns_cbranch_scc1 L_ldstart2" % (sMask, vTmp + 1, sT0, sMask))
        early_loads(True)
        a("s_branch L_ldstart_ret")
        a.label("L_ldstart2")
        a(hint_load(CK + 1), optional=True)
        a("s_branch L_ldstart_ret")
    a.label("L_hint2")
    a(hint_load(CK + 1), optional=True)
    a("s_branch L_hint2_ret")
    a.label("L_slowstart")
    two_stage("L_slow", False, hint_load(CK + 1), [flag_load(CK + 1)], grp_check(0), 0)
    early_loads(True)
    a("s_branch L_slowstart_ret")
    a.label("L_latewait")
    poll("L_latewaitp", late_loads, late_check, sleep=4)
    a("s_branch L_latewait_ret")
    a.label("L_ehwait")
    poll("L_ehwaitp", [eh_load], ["v_cmp_ne_u32 vcc, %s, v%d" % (sN, CK)], sleep=cfg.get("ehsleep", 3), limit=256)
    a("s_branch L_ehwait_ret" if not cfg.get("noeh") else "s_endpgm")
    a.label("L_guardwait")
    poll("L_guardwaitp", guard_reads, ["v_cmp_gt_u32 vcc, 11, v%d" % (vTmp + 1)], wait="lgkmcnt(0)")
    a("s_branch L_guardwait_ret")
    a.label("L_owait")
    a("s_waitcnt lgkmcnt(0)")
    poll("L_owaitp", loads, chk, sleep=cfg.get("osleep", 2))
    for i in range(4):
        a(o_write(i), optional=True)
    a("s_branch L_owait_ret")

    def wave_max(dst_s, src, tmp):
        first = True
        for pat in ("quad_perm:[1,0,3,2] row_mask:0xf", "quad_perm:[2,3,0,1] row_mask:0xf", "row_half_mirror row_mask:0xf",
                    "row_mirror row_mask:0xf", "row_bcast:15 row_mask:0xa", "row_bcast:31 row_mask:0xc"):
            s_ = src if first else tmp
            a("v_max_u32_dpp v%d, v%d, v%d %s bank_mask:0xf" % (tmp, s_, s_, pat))
            first = False
        a("v_readlane_b32 %s, v%d, 63" % (dst_s, tmp))

    def top2(key, mid=None):
        wave_max(sA, key, T + 8)
        a("v_cmp_eq_u32 %s, %s, v%d" % (sP0, sA, key))
        a("v_cndmask_b32 v%d, v%d, 0, %s" % (T + 9, key, sP0))
        if mid:
            mid()
        wave_max(sB, T + 9, T + 8)
        a("v_cmp_eq_u32 %s, %s, v%d" % (sP1, sB, key))

    a.label("L_cand")
    a("v_add_u32 v%d, %d, v%d" % (T + 4, L_RR, vL4))
    a("ds_read_b32 v%d, v%d\nds_read_b32 v%d, v%d offset:256" % (T, T + 4, T + 2, T + 4), optional=True)
    a("s_lshl_b32 %s, %s, 6\ns_sub_u32 %s, 2047, %s\nv_sub_u32 v%d, %s, v0" % (sT0, sTB, sT0, sT0, T + 5, sT0))
    a("v_mov_b32 v%d, %s\nv_mov_b32 v%d, %s" % (T + 1, sN, T + 3, sN))
    a("s_waitcnt lgkmcnt(0)")
    a("v_ashrrev_i32 v%d, 31, v%d\nv_or_b32 v%d, 0x80000000, v%d\nv_xor_b32 v%d, v%d, v%d" % (T + 6, T, T + 6, T + 6, T, T, T + 6))
    a("v_and_b32 v%d, 0xffff0000, v%d\nv_or_b32 v%d, v%d, v%d" % (T, T, T, T, T + 5))
    CB = cfg.get("candbar", 0)
    if CB == 0:
        a("s_barrier")
    top2(T, (lambda: a("s_barrier")) if CB == 1 else None)
    a("v_cndmask_b32 v%d, 0, 16, %s\nv_lshlrev_b32 v%d, 3, v0" % (T + 4, sP1, T + 5))
    a("s_branch L_cand_ret")
    a.label("L_cand2")
    a("s_lshl_b32 %s, %s, 5\ns_add_u32 %s, %s, %d\ns_lshl_b32 %s, %s, 9\ns_add_u32 %s, %s, %d" % (sT0, sTB, sT0, sT0, CAND_OFF, sT1, sTB, sT1, sT1, ST_OFF))
    a("buffer_store_dwordx2 %s, v%d, %s, %s offen sc1" % (vr(T + 2, 2), T + 5, SWS, sT1), optional=True)
    a("s_or_b64 exec, %s, %s" % (sP0, sP1))
    a("buffer_store_dwordx4 %s, v%d, %s, %s offen sc1" % (vr(T, 4), T + 4, SWS, sT0), optional=True)
    a("s_mov_b64 exec, -1\ns_branch L_cand2_ret")

    def role(i, R, entry, steps, mid=None):
        lbl = "L_st%d" % i
        a.label(lbl)
        a.vm, a.lg = saved[lbl]
        entry(lbl + "_skip")
        hooks = dict(zip(R[1:-1], steps[:-1]))
        for s in range(R[1], R[-1]):
            emit_tile(s, "_r%d" % i, hooks, mid)
        steps[-1]()
        a("s_branch %s_ret" % lbl)

    def cond_poll(lbl, loads, checks):
        a.wait(vm="r")
        for t in checks:
            a(t)
        a("s_cbranch_vccz %s_done" % lbl)
        sv = list(a.vm)
        poll(lbl, loads, checks, sleep=4)
        a.vm = sv
        a.label(lbl + "_done")

    def lds_poll(lbl, off, cmp_):
        a("v_mov_b32 v%d, %d" % (T + 7, L_SEL))
        poll(lbl, ["ds_read_b32 v%d, v%d offset:%d" % (T + 6, T + 7, off)], [cmp_ % (T + 6)], wait="lgkmcnt(0)")

    def sel_poll(lbl):
        lds_poll(lbl, 24, "v_cmp_eq_u32 vcc, 0, v%d")
        a("ds_read_b128 %s, v%d\nds_read_b64 %s, v%d offset:16" % (vr(T, 4), T + 7, vr(T + 4, 2), T + 7))
        a("s_waitcnt lgkmcnt(0)")

    def count_up():
        a("v_mov_b32 v%d, 1\nv_mov_b32 v%d, %d\ns_mov_b64 exec, 1" % (T + 6, T + 7, L_SEL))
        a("ds_add_u32 v%d, v%d offset:32" % (T + 7, T + 6), optional=True)
        a("s_mov_b64 exec, -1")

    def raise_flag(soff, near=None):
        a.wait(vm="rs")
        a("s_mov_b64 exec, 1")
        if near:
            a("buffer_store_dword v%d, v%d, %s, %s offen" % (vNn, vZ, SWS, near), optional=True)
        a("buffer_store_dword v%d, v%d, %s, %s offen sc1" % (vNn, vZ, SWS, soff), optional=True)
        a("s_mov_b64 exec, -1")

    def w_dma_plan(items, stride, t0_, t1_):
        per = -(-len(items) // (t1_ - t0_))
        def mk(chunk):
            def f():
                for (srd, i) in chunk:
                    a("s_add_u32 m0, %s, %d\ns_add_u32 %s, %s, %d" % (sFd, 1024 * i, sT0, sFg, 8 * i * stride))
                    a("buffer_load_dwordx4 v%d, %s, %s offen %s lds" % ((vFg, vFd)[i & 1], srd, sT0, cfg.get("ffnmod", "nt")), tag="rw")
            return f
        return dict((t0_ + k, mk(items[k * per:(k + 1) * per])) for k in range(t1_ - t0_) if items[k * per:(k + 1) * per] and not cfg.get("x_nodma"))

    XA, WB, AC = T + 10, T + 18, T + 50

    def w_reads(off):
        for t in range(4):
            for ks in range(2):
                tr_read(WB + (t * 2 + ks) * 4, AD + t, off + ks * 4096, None)

    def w_mfmas():
        for ks in range(2):
            for t in range(4):
                mfma16(AC + 4 * t, XA + 4 * ks, WB + (t * 2 + ks) * 4, ks == 0)

    def select_rows(n):
        for g in range(1, 4):
            a("s_lshl_b64 exec, exec, 16")
            for r in range(n):
                a("v_mov_b32 v%d, v%d" % (AC + r, AC + 4 * g + r))
        a("s_mov_b64 exec, -1")

    NF = 0 if cfg.get("noffn") else 28

    cand_load = "buffer_load_dwordx4 %s, v1, %s, %s offen sc1" % (vr(T, 4), SWS, sA)
    def st0a():
        a("s_mov_b32 %s, %d" % (sA, CAND_OFF))
        a(cand_load, tag="r")
    def st0b():
        cond_poll("L_candpoll", [cand_load],
                  ["v_cmp_ne_u32 vcc, %s, v%d" % (sN, T + 1), "v_cmp_ne_u32 %s, %s, v%d" % (sP0, sN, T + 3), "s_or_b64 vcc, vcc, %s" % sP0])
        top2(T)
        a("s_ff1_i32_b64 %s, %s\ns_ff1_i32_b64 %s, %s" % (sC, sP0, sD_, sP1))
        a("s_and_b32 %s, %s, 63\ns_and_b32 %s, %s, 63" % (sC, sC, sD_, sD_))
        a("v_readlane_b32 %s, v%d, %s\nv_readlane_b32 %s, v%d, %s" % (sC, T + 2, sC, sD_, T + 2, sD_))
        a("s_and_b32 %s, %s, 2047\ns_sub_u32 %s, 2047, %s\ns_and_b32 %s, %s, 2047\ns_sub_u32 %s, 2047, %s" % (sE, sA, sE, sE, sF, sB, sF, sF))
        a("v_add_u32 v%d, %d, v%d\nv_mov_b32 v%d, 1" % (T + 1, L_SEL, vL4, T))
        for i, sv in enumerate((sE, sF, sC, sD_, sA, sB)):
            a("v_writelane_b32 v%d, %s, %d" % (T, sv, i))
        a("s_mov_b64 exec, 0x3f")
        a("ds_write_b32 v%d, v%d" % (T + 1, T))
        a("s_waitcnt lgkmcnt(0)\ns_mov_b64 exec, 0x40")
        a("ds_write_b32 v%d, v%d\nds_add_u32 v%d, v%d offset:8" % (T + 1, T, T + 1, T), optional=True)
        a("s_mov_b64 exec, -1")
    role(0, R0, lambda skip: None, [st0a, st0b])

    def st1e(skip):
        a("s_cmp_lt_u32 %s, %d\ns_cbranch_scc1 L_st1_go" % (sFB, NF))
        count_up()
        a("s_branch %s" % skip)
        a.label("L_st1_go")
    def st1s():
        a("s_mul_i32 %s, %s, %d\ns_lshl_b32 %s, %s, 7\ns_add_u32 %s, %s, %s" % (sFg, sFJ, 64 * 3584, sA, sFB, sFg, sFg, sA))
        a("s_cmp_eq_u32 %s, 3\ns_cselect_b64 s[28:29], s[32:33], s[28:29]" % sW)
    def st1a():
        for i in range(8):
            a("v_mov_b32 v%d, 0x3f803f80" % (XA + i))
        sel_poll("L_selpoll1")
        a("v_cndmask_b32 v%d, v%d, v%d, %s" % (T, T, T + 1, sAux))
        a("v_and_b32 v%d, 48, v0\nv_lshl_add_u32 v%d, v%d, 10, v%d" % (T + 1, T + 1, T, T + 1))
        a("s_lshl_b32 %s, %s, 7\ns_mov_b32 exec_lo, 0x33333333\ns_mov_b32 exec_hi, 0x33333333" % (sA, sFJ))
        a("buffer_load_dwordx4 %s, v%d, %s, %s offen" % (vr(XA, 4), T + 1, SX, sA), tag="r")
        a("buffer_load_dwordx4 %s, v%d, %s, %s offen offset:64" % (vr(XA + 4, 4), T + 1, SX, sA), tag="r")
        a("s_mov_b64 exec, -1")
        for t in range(2):
            a("v_and_b32 v%d, 0xffff0000, v%d\nv_lshlrev_b32 v%d, 16, v%d\nv_rcp_f32 v%d, v%d" % (T + 4 + t, T + 2 + t, T + 2 + t, T + 2 + t, T + 4 + t, T + 4 + t))
    def st1b():
        a.wait(vm=("rw", "r"))
        w_reads(0)
        a("s_lshl_b32 %s, %s, 3\ns_add_u32 %s, %s, %s\ns_lshl_b32 %s, %s, 1\ns_lshr_b32 %s, %s, 1\ns_add_u32 %s, %s, %s" % (sB, sFB, sB, sB, sFJ, sB, sB, sC, sW, sB, sB, sC))
        a("s_and_b32 %s, %s, 15\ns_lshl_b32 %s, %s, 5\ns_add_u32 %s, %s, %s\ns_lshl_b32 %s, %s, 2\ns_add_u32 %s, %s, %d" % (sA, sB, sC, sFB, sA, sA, sC, sA, sA, sA, sA, GUH_OFF))
        a("s_lshl_b32 %s, %s, 7\ns_add_u32 %s, %s, %d" % (sC, sB, sC, sC, GUF_OFF))
        a("s_lshl_b32 %s, %s, 9\ns_add_u32 %s, %s, %d" % (sB, sB, sB, sB, GU_OFF))
        a("v_lshlrev_b32 v%d, 3, v0" % T)
        a("s_waitcnt lgkmcnt(0)")
        w_mfmas()
        count_up()
        select_rows(3)
        for t in range(2):
            a("v_fma_f32 v%d, -v%d, v%d, v%d" % (AC + t, T + 2 + t, AC + 2, AC + t))
        for t in range(2):
            a("v_mul_f32 v%d, v%d, v%d" % (AC + t, T + 4 + t, AC + t))
        a("buffer_store_dwordx2 %s, v%d, %s, %s offen sc1" % (vr(AC, 2), T, SWS, sB), tag="rs")
    D1 = cfg.get("dma1", [R1[1], R1[3] - 3])
    role(1, R1, st1e, [st1s, st1a, st1b, lambda: raise_flag(sC, sA)],
         w_dma_plan([(SG, i) for i in range(8)], 3584, *D1))

    word_load = "buffer_load_dword v%d, v%d, %s, %s offen sc1" % (T + 1, T, SWS, sA)
    word_check = ["v_cmp_ne_u32 vcc, %s, v%d" % (sN, T + 1)]
    PB, P = WB, T + 2
    def st2s():
        a("s_lshl_b32 %s, %s, 16\ns_lshl_b32 %s, %s, 7\ns_add_u32 %s, %s, %s" % (sFg, sFB, sA, sFJ, sFg, sFg, sA))
    def st2a():
        a("v_and_b32 v%d, 60, v%d" % (T, vL4))
        a("s_lshl_b32 %s, %s, 7\ns_add_u32 %s, %s, %d" % (sA, sFB, sA, sA, GUH_OFF))
        a(word_load, tag="r")
    def st2b():
        a.wait(vm="r")
        a(word_check[0] + "\ns_cbranch_vccz L_gu_ok")
        sv = list(a.vm)
        a("s_lshl_b32 %s, %s, 11\ns_add_u32 %s, %s, %d\nv_lshlrev_b32 v%d, 5, v%d" % (sB, sFB, sB, sB, GUF_OFF, T + 2, T))
        two_stage("L_gu", True, word_load, ["buffer_load_dword v%d, v%d, %s, %s offen sc1" % (T + 1, T + 2, SWS, sB)], word_check)
        a.vm = sv
        a.label("L_gu_ok")
        a("s_lshl_b32 %s, %s, 13\ns_add_u32 %s, %s, %d\ns_add_u32 %s, %s, 4096" % (sA, sFB, sA, sA, GU_OFF, sB, sA))
        for j in range(8):
            a("buffer_load_dwordx4 %s, v1, %s, %s offen offset:%d sc1" % (vr(PB + 4 * j, 4), SWS, sA if j < 4 else sB, 1024 * (j & 3)), tag="r")
        a("v_and_b32 v%d, 124, v%d\nv_lshrrev_b32 v%d, 5, v0\nv_lshl_add_u32 v%d, v%d, 1, v%d\nv_add_u32 v%d, %d, v%d" % (T + 8, vL4, T + 9, T + 8, T + 9, T + 8, T + 8, L_H, T + 8))
    def st2c():
        a.wait(vm="r")
        for j in range(1, 8):
            for i in range(4):
                a("v_add_f32 v%d, v%d, v%d" % (P + i, PB + i if j == 1 else P + i, PB + 4 * j + i))
        a("v_mov_b32 v%d, 1\nv_mov_b32 v%d, %d" % (T + 6, T + 7, L_SEL))
        a("v_permlane32_swap_b32 v%d, v%d\nv_permlane32_swap_b32 v%d, v%d" % (P, P + 2, P + 1, P + 3))
        repack(P, T, 2)
        for op in ("v_mul_f32 v%d, " + f32(-LOG2E) + ", v%d", "v_exp_f32 v%d, v%d", "v_add_f32 v%d, 1.0, v%d", "v_rcp_f32 v%d, v%d"):
            for i in range(2):
                a(op % (T + i, P + i if op.startswith("v_mul") else T + i))
        a("v_mul_f32 v%d, v%d, v%d\nv_mul_f32 v%d, v%d, v%d" % (P, P, T, P + 1, P + 1, T + 1))
        repack(P, T, 1)
        a("v_mul_f32 v%d, v%d, v%d\nv_mul_f32 v%d, v%d, v%d" % (P, P, P + 2, P + 1, P + 1, P + 3))
        a("v_cvt_pk_bf16_f32 v%d, v%d, v%d" % (T, P, P + 1))
        a("ds_write_b16 v%d, v%d\nds_write_b16_d16_hi v%d, v%d offset:128" % (T + 8, T, T + 8, T))
        a("s_waitcnt lgkmcnt(0)")
        a("ds_write_b32 v%d, v%d offset:44" % (T + 7, T + 6), optional=True)
    ffn_entry = lambda skip: a("s_cmp_ge_u32 %s, %d\ns_cbranch_scc1 %s" % (sFB, NF, skip))
    role(3, R3, ffn_entry, [st2a, st2b, st2c])
    def st2d():
        a.wait(vm="rw")
        w_reads(0)
        a("v_and_b32 v%d, 1, v0\nv_and_b32 v%d, 48, v0\nv_lshl_add_u32 v%d, v%d, 7, v%d\nv_add_u32 v%d, %d, v%d"
          % (T + 9, T + 8, T + 9, T + 9, T + 8, T + 9, L_H, T + 9))
        lds_poll("L_hpoll", 44, "v_cmp_eq_u32 vcc, 0, v%d")
        a("ds_read_b128 %s, v%d\nds_read_b128 %s, v%d offset:64" % (vr(XA, 4), T + 9, vr(XA + 4, 4), T + 9))
        a("s_lshl_b32 %s, %s, 12\ns_lshl_b32 %s, %s, 9\ns_add_u32 %s, %s, %s\ns_add_u32 %s, %s, %d" % (sB, sFB, sA, sFJ, sB, sB, sA, sB, sB, Y_OFF))
        a("s_lshl_b32 %s, %s, 5\ns_add_u32 %s, %s, %s\ns_mul_i32 %s, %s, %d\ns_add_u32 %s, %s, %d" % (sA, sFJ, sA, sA, sFB, sA, sA, FS, sA, sA, YF_OFF))
        a("v_lshlrev_b32 v%d, 3, v0" % T)
        a("s_waitcnt lgkmcnt(0)")
        w_mfmas()
        select_rows(2)
        a("buffer_store_dwordx2 %s, v%d, %s, %s offen sc1" % (vr(AC, 2), T, SWS, sB), tag="rs")
    role(2, R2, ffn_entry, [st2s, st2d, lambda: raise_flag(sA)],
         w_dma_plan([(SD, i) for i in range(8)], 1024, *cfg.get("dma2", [R2[1], R2[2] - 3])))

    yf_load = "buffer_load_dword v%d, v%d, %s, %s offen sc1" % (CK + 1, T + 2, SWS, sA)
    yf_check = ["v_cmp_ne_u32 vcc, %s, v%d" % (sN, CK + 1)]
    a.label("L_y1")
    a("v_min_u32 v%d, %d, v%d" % (T + 2, 27 * FS, vFl))
    a("s_and_b32 %s, %s, 3\ns_lshl_b32 %s, %s, 1\ns_add_u32 %s, %s, %s\ns_mul_i32 %s, %s, %d\ns_add_u32 %s, %s, %d"
      % (sA, sTB, sA, sA, sA, sA, sTH, sA, sA, 32 * FS, sA, sA, YF_OFF))
    a(yf_load, optional=True)
    a("ds_read_b64 %s, v%d offset:16" % (vr(T + 4, 2), vTmp), optional=True)
    a("s_branch L_y1_ret")
    a.label("L_y2")
    if cfg.get("noffn") or cfg.get("x_ffnpar") is not None:
        a("s_branch L_y2_ret")
    a("s_waitcnt vmcnt(0)")
    a(yf_check[0] + "\ns_cbranch_vccz L_yf_done")
    poll("L_yfpoll", [yf_load], yf_check, sleep=4, wait="vmcnt(0)")
    a.label("L_yf_done")
    a("s_and_b32 %s, %s, 3\ns_lshl_b32 %s, %s, 3\ns_add_u32 %s, %s, %s\ns_lshl_b32 %s, %s, 7\ns_add_u32 %s, %s, %d"
      % (sA, sTB, sA, sA, sA, sA, sW, sA, sA, sA, sA, Y_OFF))
    a("v_and_b32 v%d, 15, v0\nv_and_b32 v%d, 48, v0\nv_lshlrev_b32 v%d, 8, v%d\nv_lshl_add_u32 v%d, v%d, 3, v%d" % (T + 2, T + 3, T + 3, T + 3, T + 3, T + 2, T + 3))
    for i in range(7):
        a("buffer_load_dwordx2 %s, v%d, %s, %s offen sc1" % (vr(YB + 2 * i, 2), T + 3, SWS, sA), optional=True)
        a("s_add_u32 %s, %s, 16384" % (sA, sA))
    a("s_branch L_y2_ret")
    a.label("L_y3")
    U = T + 4
    a("s_mov_b32 vcc_lo, 0\ns_mov_b32 vcc_hi, -1\nv_cndmask_b32 v%d, v%d, v%d, vcc" % (U, U, U + 1))
    a("v_ashrrev_i32 v%d, 31, v%d\nv_not_b32 v%d, v%d\nv_or_b32 v%d, 0x80000000, v%d\nv_xor_b32 v%d, v%d, v%d\nv_and_b32 v%d, 0xffff0000, v%d"
      % (U + 1, U, U + 1, U + 1, U + 1, U + 1, U, U, U + 1, U, U))
    a("v_mul_f32 v%d, %s, v%d\nv_exp_f32 v%d, v%d\nv_add_f32 v%d, 1.0, v%d\nv_rcp_f32 v%d, v%d" % (U, f32(-LOG2E), U, U, U, U, U, U, U))
    bf16_round(U, U)
    a("v_and_b32 v%d, 15, v0\nv_and_b32 v%d, 32, v0\nv_lshl_add_u32 v%d, v%d, 2, v%d\nv_lshl_add_u32 v%d, %s, 4, v%d\nv_lshlrev_b32 v%d, 2, v%d\nv_add_u32 v%d, %d, v%d"
      % (U + 2, U + 3, U + 2, U + 3, U + 2, U + 2, sW, U + 2, U + 2, U + 2, U + 2, L_UPD, U + 2))
    a("s_waitcnt vmcnt(5)")
    for i in range(1, 7):
        a("v_pk_add_f32 %s, %s, %s" % (vr(YB, 2), vr(YB, 2), vr(YB + 2 * i, 2)))
    a("v_permlane32_swap_b32 v%d, v%d\nv_add_f32 v%d, v%d, v%d\nv_mov_b32 v%d, v%d" % (YB, YB + 1, YB, YB, YB + 1, YB + 1, YB))
    a("v_permlane16_swap_b32 v%d, v%d\nv_add_f32 v%d, v%d, v%d" % (YB, YB + 1, YB, YB, YB + 1))
    bf16_round(YB, YB)
    a("v_mul_f32 v%d, v%d, v%d" % (YB, YB, U))
    bf16_round(YB, YB)
    a("ds_write_b32 v%d, v%d" % (U + 2, YB), optional=True)
    a("s_branch L_y3_ret")

    for (lbl, u) in grpwaits:
        a.label(lbl)
        two_stage(lbl, True, hint_load(CK + 1), [flag_load(CK + 1)], grp_check(u), 8 if u == 1 else 12)
        a("s_branch %s_ret" % lbl)

    a.label("L_fallback")
    a("s_nop 7")
    a("s_lshl_b32 %s, %s, 19\ns_lshl_b32 %s, %s, 11\ns_add_u32 %s, %s, %s\nv_add_u32 v%d, %s, v1" % (sT0, sHG, sT1, sHH, sT0, sT0, sT1, T, sT0))
    a("v_mov_b32 v%d, 0xff800000\ns_mov_b32 %s, 0" % (T + 1, sT2))
    def fb_off():
        a("s_lshl_b32 %s, %s, 13" % (sT0, sT2))
    a.label("L_fb1")
    fb_off()
    a("buffer_load_dwordx4 %s, v%d, %s, %s offen sc1" % (vr(KVB(0), 4), T, SWS, sT0), optional=True)
    a("s_waitcnt vmcnt(0)")
    qk(SA, 0, QB)
    for i in range(8):
        a("v_max3_f32 v%d, v%d, v%d, v%d" % (T + 1, SA + 2 * i, SA + 2 * i + 1, T + 1))
    a("s_add_u32 %s, %s, 1\ns_cmp_lt_u32 %s, 64\ns_cbranch_scc1 L_fb1" % (sT2, sT2, sT2))
    a("v_mov_b32 v%d, v%d\nv_permlane32_swap_b32 v%d, v%d\nv_max_f32 v%d, v%d, v%d" % (T + 2, T + 1, T + 1, T + 2, T + 1, T + 1, T + 2))
    for i in range(16):
        a("v_sub_f32 v%d, 0, v%d\nv_mov_b32 v%d, 0" % (SB + i, T + 1, OB + i))
    a("s_mov_b32 %s, 0" % sT2)
    a.label("L_fb2")
    fb_off()
    a("buffer_load_dwordx4 %s, v%d, %s, %s offen sc1" % (vr(KVB(0), 4), T, SWS, sT0), optional=True)
    a("s_mov_b64 exec, %s" % sVM)
    a("buffer_load_dwordx4 %s, v%d, %s, %s offen offset:1024 sc1" % (vr(KVB(0) + 4, 4), T, SWS, sT0), optional=True)
    a("buffer_load_dwordx4 %s, v%d, %s, %s offen offset:1280 sc1" % (vr(KVB(0) + 8, 4), T, SWS, sT0), optional=True)
    a("s_mov_b64 exec, -1\ns_waitcnt vmcnt(0)")
    a("v_mfma_f32_32x32x16_bf16 %s, %s, %s, %s" % (vr(SA, 16), vr(KVB(0), 4), vr(QB, 4), vr(SB, 16)))
    ex(SA, 0, 16)
    pv(OB, 0, 0, SA)
    pv(OB, 0, 1, SA)
    a("s_add_u32 %s, %s, 1\ns_cmp_lt_u32 %s, 64\ns_cbranch_scc1 L_fb2" % (sT2, sT2, sT2))
    a("s_nop 15\nv_rcp_f32 v%d, v%d\ns_nop 1\ns_branch L_fallback_ret" % (OB + 8, OB + 8))

    a.label("L_end")
    a("s_endpgm")
    a.raw('.section .rodata,"a"')
    a.raw(".p2align 6")
    a.raw(".amdhsa_kernel %s_kernel" % NAME)
    a.raw("""  .amdhsa_next_free_vgpr 256
  .amdhsa_next_free_sgpr 102
  .amdhsa_accum_offset 256
  .amdhsa_group_segment_fixed_size 0
  .amdhsa_kernarg_size 88
  .amdhsa_user_sgpr_count 2
  .amdhsa_user_sgpr_kernarg_segment_ptr 1
  .amdhsa_system_sgpr_workgroup_id_x 1
.end_amdhsa_kernel""")
    text = a.render()
    bad = verify(text)
    assert not bad, bad
    return text, stamps


HEADER = """; out = x + (MHA(LN(x)) @ Wo) * silu(LN(x) + routed SwiGLU update of the two top-scoring tokens)
; One launch, 256 co-resident workgroups of 8 waves (hg = id & 7: four heads, tb = id >> 3: 64 tokens).
;     ones in the V operand give the row sums.  The softmax shift is 0; the row sums are checked at run time and a
; write-through copy), so placement only changes speed.  O slots are emptied (all-ones) and acknowledged earlier in the
"""

if __name__ == "__main__":
    out = sys.argv[1] if len(sys.argv) > 1 else "cdna_kernels/%s.s" % NAME
    text, _ = generate()
    open(out, "w").write(HEADER + text)
    print("wrote", out, len(text), "bytes")
```

```python
import sys, os, subprocess, struct, ctypes
sys.path.insert(0, "cdna_kernels")
import numpy as np
from cdna_launch import AsmKernel, DeviceBuffer, with_harness_metadata, _hip, _check

TEMPLATE = """; @launch grid=({grid},1,1) block=({block},1,1) lds={lds}
.amdgcn_target "amdgcn-amd-amdhsa--gfx950"
.text
.globl mb_kernel
.p2align 8
.type mb_kernel,@function
mb_kernel:
    s_load_dwordx2 s[4:5], s[0:1], 0
    v_lshrrev_b32 v1, 6, v0
    s_nop 1
    v_readfirstlane_b32 s20, v1
    s_waitcnt lgkmcnt(0)
    s_mov_b32 s8, s4
    s_mov_b32 s9, s5
    s_mov_b32 s10, {outbytes}
    s_mov_b32 s11, 0x00020000
    v_mov_b32 v250, v0
{init}
    s_mov_b32 s12, {iters}
    s_barrier
    s_memtime s[14:15]
    s_waitcnt lgkmcnt(0)
.p2align 6
L_loop:
{body}
    s_sub_u32 s12, s12, 1
    s_cmp_lg_u32 s12, 0
    s_cbranch_scc1 L_loop
    s_nop 15
    s_nop 15
    s_memtime s[16:17]
    s_waitcnt lgkmcnt(0)
    v_mov_b32 v2, s14
    v_mov_b32 v3, s16
    s_lshl_b32 s3, s2, 7
    s_lshl_b32 s21, s20, 3
    s_add_u32 s3, s3, s21
    v_mov_b32 v1, s3
    v_and_b32 v4, 63, v250
    v_cmp_eq_u32 vcc, 0, v4
    s_and_saveexec_b64 s[22:23], vcc
    buffer_store_dwordx2 v[2:3], v1, s[8:11], 0 offen
    s_waitcnt vmcnt(0)
    s_endpgm
.section .rodata,"a"
.p2align 6
.amdhsa_kernel mb_kernel
  .amdhsa_next_free_vgpr {nvgpr}
  .amdhsa_next_free_sgpr 102
  .amdhsa_accum_offset {accum}
  .amdhsa_group_segment_fixed_size 0
  .amdhsa_kernarg_size 8
  .amdhsa_user_sgpr_count 2
  .amdhsa_user_sgpr_kernarg_segment_ptr 1
  .amdhsa_system_sgpr_workgroup_id_x 1
.end_amdhsa_kernel
"""

def build(name, body, init="", iters=1000, grid=256, block=256, lds=0, nvgpr=256, accum=256):
    src = TEMPLATE.format(grid=grid, block=block, lds=lds, outbytes=grid*128, init=init, iters=iters,
                          body=body, nvgpr=nvgpr, accum=accum)
    if nvgpr < 256:
        src = src.replace("v250", "v%d" % (min(nvgpr, accum)-1))
    src = with_harness_metadata(src, "mb_kernel", 1)
    os.makedirs("mb", exist_ok=True)
    s = "mb/%s.s" % name; co = "mb/%s.co" % name
    open(s, "w").write(src)
    r = subprocess.run(["clang", "-x", "assembler", "-target", "amdgcn-amd-amdhsa",
                        "-mcpu=gfx950", s, "-o", co], capture_output=True, text=True)
    if r.returncode != 0:
        print(r.stderr); raise SystemExit(1)
    return co

def run(name, body, init="", iters=1000, grid=256, block=256, lds=0, nvgpr=256, accum=256, reps=3, div=1, verbose=False):
    co = build(name, body, init, iters, grid, block, lds, nvgpr, accum)
    if not os.path.exists('/dev/kfd'):
        print(name, "assembled"); return None
    k = AsmKernel(co, "mb_kernel")
    out = DeviceBuffer(grid*128)
    ka = struct.pack("<Q", out.ptr)
    res = None
    for _ in range(reps):
        _check(_hip.hipMemset(ctypes.c_void_p(out.ptr), 0, grid*128))
        k.launch((grid,1,1), (block,1,1), ka, lds)
        _check(_hip.hipDeviceSynchronize())
        res = out.to_numpy(np.uint32, (grid, 16, 2))[:, :block//64, :]
    k.unload()
    st = res[:, :, 0].astype(np.int64); en = res[:, :, 1].astype(np.int64)
    d = (en - st[:, :1]) & 0xffffffff
    tot = d.max(axis=1) / iters
    wps = max(1, block // 256)
    print("%-40s waves/SIMD=%d  cyc/iter/wave: med=%.1f min=%.1f max=%.1f" % (name, wps, np.median(tot)/wps/div, tot.min()/wps/div, tot.max()/wps/div))
    if verbose:
        print("   per-wave dur:", np.median((en - st) & 0xffffffff, axis=0) / iters / div)
    return tot
```

```python
from mb import run
def rep(f, n): return "\n".join(f(i) for i in range(n))
ex = lambda a, b: rep(lambda i: "    v_exp_f32 v%d, v%d" % (52+a+i, 20+a+i), b-a)
T = {
 "qk_vv": "v_mfma_f32_32x32x16_bf16 v[84:99], v[4:7], v[8:11], 0",
 "qk_av": "v_mfma_f32_32x32x16_bf16 v[84:99], a[4:7], v[8:11], 0",
 "qk_aa": "v_mfma_f32_32x32x16_bf16 v[84:99], a[4:7], a[8:11], 0",
 "qk_aa_a": "v_mfma_f32_32x32x16_bf16 a[16:31], a[4:7], a[8:11], 0",
 "qk_same": "v_mfma_f32_32x32x16_bf16 v[84:99], v[4:7], v[4:7], 0",
 "sm_vv": "v_smfmac_f32_32x32x32_bf16 v[84:99], v[12:15], v[68:75], v3",
 "sm_av": "v_smfmac_f32_32x32x32_bf16 v[84:99], a[12:15], v[68:75], v3",
 "sm_av_a": "v_smfmac_f32_32x32x32_bf16 a[16:31], a[12:15], v[68:75], v3",
 "sm_aa_a": "v_smfmac_f32_32x32x32_bf16 a[16:31], a[12:15], a[0:7], v3",
 "sm_off2": "v_smfmac_f32_32x32x32_bf16 v[84:99], v[14:17], v[68:75], v3",
 "sm_off2b": "v_smfmac_f32_32x32x32_bf16 v[84:99], v[12:15], v[70:77], v2",
 "qk_off2": "v_mfma_f32_32x32x16_bf16 v[84:99], v[4:7], v[10:13], 0",
}
ini = rep(lambda i: "    v_mov_b32 v%d, 0x3c000000" % (i+4), 100) + "\n    v_mov_b32 v3, 0xdddddddd\n    v_mov_b32 v2, 0xdddddddd\n" + rep(lambda i: "    v_accvgpr_write_b32 a%d, 0" % i, 32)
run("exponly", "\n".join([ex(0,16)]*8), ini, iters=300, block=512, nvgpr=160, accum=128, div=8)
for n, m in T.items():
    try:
        run(n, "\n".join([ex(0,8) + "\n    " + m + "\n" + ex(8,16)]*8), ini, iters=300, block=512, nvgpr=160, accum=128, div=8)
    except SystemExit:
        print(n, "does not assemble")
```
